```python
import torch

def _softmax(x, axis=-1):
    return torch.softmax(x, dim=axis)
def _gelu(x):
    return torch.nn.functional.gelu(x, approximate="tanh")
def _silu(x):
    return torch.nn.functional.silu(x)
def _sigmoid(x):
    return torch.sigmoid(x)
def _layernorm(x, axis=-1, eps=1e-5):
    m = x.mean(dim=axis, keepdim=True)
    v = x.var(dim=axis, keepdim=True, unbiased=False)
    return (x - m) / torch.sqrt(v + eps)
def _scatter_add(tgt, idx, src, axis=0):
    return tgt.clone().index_add_(axis, idx, src)
def _segment_sum(src, seg, n):
    out = torch.zeros((n,) + src.shape[1:], dtype=src.dtype)
    return out.index_add_(0, seg, src)
def _pad(x, pw):
    flat = tuple(v for pair in reversed(pw) for v in pair)
    return torch.nn.functional.pad(x, flat)

kernel_name = 'gated_mix__mha_block__geglu_ffn__prompt'

def setup_inputs():

    _w = (lambda a: (lambda t: t.to(torch.bfloat16) if t.is_floating_point() else t)(torch.as_tensor(a)))
    def _A_setup():
        B, S, D, H = 1, 2048, 448, 16
        return {
            "x": _w((lambda *s: torch.randn(*s, dtype=torch.bfloat16) * 0.05)(B, S, D)),
            "wqkv": _w((lambda *s: torch.randn(*s, dtype=torch.bfloat16) * 0.8)(D, 3 * D)),
            "wo": _w((lambda *s: torch.randn(*s, dtype=torch.bfloat16) * 0.05)(D, D)),
        }
    _A_in = _A_setup()

    def _B_setup():
        B, S, D, F = 1, 2048, 448, 1792
        return {
            "x": _w((lambda *s: torch.randn(*s, dtype=torch.bfloat16) * 0.05)(B, S, D)),
            "w_gate": _w((lambda *s: torch.randn(*s, dtype=torch.bfloat16) * 0.1)(D, F)),
            "w_up": _w((lambda *s: torch.randn(*s, dtype=torch.bfloat16) * 0.1)(D, F)),
            "w_down": _w((lambda *s: torch.randn(*s, dtype=torch.bfloat16) * 0.1)(F, D)),
        }
    _B_in = _B_setup()

    return {
        "A_x": _A_in["x"],
        "A_wqkv": _A_in["wqkv"],
        "A_wo": _A_in["wo"],
        "B_x": _B_in["x"],
        "B_w_gate": _B_in["w_gate"],
        "B_w_up": _B_in["w_up"],
        "B_w_down": _B_in["w_down"],
        "gate_w": _w((lambda *s: torch.randn(*s, dtype=torch.bfloat16) * 0.05)(448) * 16.0),
    }

def reference(A_x, A_wqkv, A_wo, B_x, B_w_gate, B_w_up, B_w_down, gate_w):
    def _A_ref(x, wqkv, wo):
        B, S, D = x.shape
        H = 16
        Dh = D // H
        qkv = (lambda x, *d: x.permute(*d))((x @ wqkv).reshape(B, S, 3, H, Dh), 2, 0, 3, 1, 4)
        q, k, v = qkv[0], qkv[1], qkv[2]
        scores = torch.einsum("bhqd,bhkd->bhqk", q, k) * (Dh ** -0.5)
        p = _softmax(scores, axis=-1)
        o = torch.einsum("bhqk,bhkd->bhqd", p, v)
        return (lambda x, *d: x.permute(*d))(o, 0, 2, 1, 3).reshape(B, S, D) @ wo

    def _B_ref(x, w_gate, w_up, w_down):
        return (_gelu(x @ w_gate) * (x @ w_up)) @ w_down

    x = A_x
    g = _sigmoid((x * gate_w).sum(-1, keepdims=True))
    a = _A_ref(x, A_wqkv, A_wo)
    b = _B_ref(x, B_w_gate, B_w_up, B_w_down)
    return g * a + (1 - g) * b
```

```python
import math
import struct
import sys

NAME = "gated_mix__mha_block__geglu_ffn__prompt"

WS_Q = 0
WS_KV = 2 << 20
WS_H = 6 << 20
WS_O = 14 << 20
WS_B = 16 << 20
WS_G = 20 << 20
WS_SIZE = 24 << 20

X_BYTES = 2048 * 448 * 2
WQKV_BYTES = 448 * 1344 * 2
WG_BYTES = 448 * 1792 * 2
WD_BYTES = 1792 * 448 * 2
WO_BYTES = 448 * 448 * 2
GW_BYTES = 448 * 2


def f2u(x):
    return struct.unpack("<I", struct.pack("<f", x))[0]


class Asm:
    def __init__(self):
        self.L = []

    def __call__(self, s):
        for line in s.strip("\n").split("\n"):
            self.L.append("    " + line.strip())

    def label(self, s):
        self.L.append(s + ":")

    def raw(self, s):
        self.L.append(s)

    def text(self):
        return "\n".join(self.L) + "\n"


def vr(b, n):
    return f"v[{b}:{b + n - 1}]"


def srd(a, d, lo, hi, nbytes):
    a(f"s_mov_b32 s{d}, s{lo}")
    a(f"s_and_b32 s{d + 1}, s{hi}, 0xffff")
    a(f"s_mov_b32 s{d + 2}, {nbytes}")
    a(f"s_mov_b32 s{d + 3}, 0x20000")


def mfma(a, d, x, y, c):
    cs = "0" if c is None else vr(c, 16)
    a(f"v_mfma_f32_32x32x16_bf16 {vr(d, 16)}, {vr(x, 4)}, {vr(y, 4)}, {cs}")


def kernel_head(a, name):
    a.raw(f".globl {name}")
    a.raw(".p2align 8")
    a.raw(f".type {name},@function")
    a.label(name)


def kernel_desc(name, vgpr, sgpr=102):
    acc = (vgpr + 3) // 4 * 4
    return f""".p2align 6
.amdhsa_kernel {name}
  .amdhsa_next_free_vgpr {vgpr}
  .amdhsa_next_free_sgpr {sgpr}
  .amdhsa_accum_offset {acc}
  .amdhsa_group_segment_fixed_size 0
  .amdhsa_kernarg_size 88
  .amdhsa_user_sgpr_count 2
  .amdhsa_user_sgpr_kernarg_segment_ptr 1
  .amdhsa_system_sgpr_workgroup_id_x 1
.end_amdhsa_kernel
"""


K1_SL = 6656
K1_ST = 8 * K1_SL


def gen_k1(a):
    SL, ST = K1_SL, K1_ST
    VX, VA, VB, VC = 10, 14, 15, 16
    VXR0, VXR2 = 17, 21
    VTR = 25
    VC3, VC1, VONE = 34, 36, 38
    VST = 40
    XF, WF, ACC = 44, 60, 84
    kernel_head(a, "k1_proj_kernel")
    a("""
    s_cmp_ge_u32 s2, 256
    s_cbranch_scc1 K1_END
    s_load_dwordx4 s[4:7], s[0:1], 0
    s_load_dwordx4 s[8:11], s[0:1], 32
    s_load_dwordx2 s[12:13], s[0:1], 80
    v_lshrrev_b32 v2, 6, v0
    v_and_b32 v1, 63, v0
    s_and_b32 s3, s2, 7
    v_readfirstlane_b32 s14, v2
    s_lshr_b32 s36, s2, 3
    s_lshr_b32 s15, s36, 3
    s_and_b32 s36, s36, 7
    s_lshl_b32 s3, s3, 2
    s_add_u32 s15, s15, s3
    """)
    a("""
    s_movk_i32 s38, 3584
    s_cmp_ge_u32 s15, 28
    s_cselect_b32 s37, 1, 0
    s_cselect_b32 s38, 2688, s38
    s_cselect_b32 s48, 56, 64
    s_sub_u32 s49, s15, 28
    s_mul_i32 s49, s49, 5
    s_add_u32 s49, s49, 12
    s_lshl_b32 s39, s38, 6
    s_mul_i32 s40, s14, %d
    s_mov_b32 s42, 0
    s_mov_b32 s44, 0
    s_mov_b32 s45, -1
    """ % SL)
    a("""
    s_mul_i32 s53, s49, 56
    s_lshl_b32 s54, s15, 7
    s_cmp_eq_u32 s37, 1
    s_cselect_b32 s50, s53, s54
    s_add_u32 s53, s53, 112
    s_cmp_eq_u32 s37, 1
    s_cselect_b32 s51, s53, s54
    s_add_u32 s53, s15, 32
    s_sub_u32 s54, s15, 16
    s_cmp_lt_u32 s15, 16
    s_cselect_b32 s52, s53, s54
    s_add_u32 s53, s49, 4
    s_cmp_eq_u32 s37, 1
    s_cselect_b32 s52, s53, s52
    s_mul_i32 s55, s52, 56
    """)
    a("""
    s_lshl_b32 s53, s36, 8
    s_lshl_b32 s54, s14, 5
    s_add_u32 s53, s53, s54
    v_lshrrev_b32 v2, 3, v1
    v_and_b32 v3, 7, v1
    """)
    for i in range(4):
        a(f"v_add_u32 v4, {8 * i}, v2")
        a("v_bfe_u32 v5, v4, 1, 3")
        a("v_xor_b32 v5, v5, v3")
        a("v_add_u32 v4, s53, v4")
        a("v_mul_u32_u24 v4, 896, v4")
        a("v_lshl_add_u32 v4, v5, 4, v4")
        if i:
            a(f"v_subrev_u32 v{VX + i}, {1024 * i}, v4")
        else:
            a(f"v_mov_b32 v{VX}, v4")
    a("""
    s_lshl_b32 s53, s14, 3
    v_add_u32 v4, s53, v2
    v_mul_lo_u32 v4, v4, s38
    v_lshrrev_b32 v5, 1, v3
    v_and_b32 v6, 2, v2
    v_xor_b32 v5, v5, v6
    v_and_b32 v7, 1, v3
    v_lshlrev_b32 v7, 4, v7
    """)
    for (dst, col, flip) in ((VA, 50, 0), (VB, 51, 1)):
        if flip:
            a("v_xor_b32 v5, 1, v5")
        a("v_lshrrev_b32 v8, 1, v5")
        a("v_mul_lo_u32 v8, v8, s48")
        a("v_and_b32 v9, 1, v5")
        a("v_lshl_add_u32 v8, v9, 5, v8")
        a("v_add3_u32 v8, v8, v7, v4")
        a(f"v_add_u32 v{dst}, s{col}, v8")
    a(f"""
    v_lshrrev_b32 v4, 2, v1
    v_add_u32 v4, s53, v4
    v_mul_u32_u24 v4, 2688, v4
    v_and_b32 v5, 3, v1
    v_lshl_add_u32 v4, v5, 4, v4
    v_add_u32 v{VC}, s55, v4
    s_waitcnt lgkmcnt(0)
    """)
    srd(a, 16, 4, 5, X_BYTES)
    a("s_cmp_eq_u32 s37, 1")
    a("s_cselect_b64 s[8:9], s[6:7], s[8:9]")
    a("s_cselect_b64 s[10:11], s[6:7], s[10:11]")
    a(f"s_mov_b32 s56, {WG_BYTES}")
    a(f"s_cselect_b32 s56, {WQKV_BYTES}, s56")
    srd(a, 20, 8, 9, "s56")
    srd(a, 24, 10, 11, "s56")
    srd(a, 28, 6, 7, WQKV_BYTES)
    srd(a, 32, 12, 13, WS_SIZE)

    def dma(c):
        st = (c % 3) * ST
        a(f"s_add_u32 m0, s40, {st}")
        a(f"s_mov_b32 s41, {c * 128}")
        for i in range(4):
            a(f"buffer_load_dwordx4 v{VX + i}, s[16:19], s41 offen offset:{1024 * i} lds")
        a(f"s_add_u32 m0, s40, {st + 4096}")
        a(f"s_mov_b32 s43, {c * 64 * 2688}")
        a(f"buffer_load_dwordx4 v{VA}, s[20:23], s42 offen lds")
        a(f"s_add_u32 m0, s40, {st + 5120}")
        a("s_nop 0")
        a(f"buffer_load_dwordx4 v{VB}, s[24:27], s42 offen lds")
        a(f"s_add_u32 m0, s40, {st + 6144}")
        a("s_mov_b64 exec, 0xffffffff")
        a(f"buffer_load_dwordx4 v{VC}, s[28:31], s43 offen lds")
        a("s_mov_b64 exec, -1")
        a("s_add_u32 s42, s42, s39")

    dma(0)
    dma(1)
    dma(2)
    a(f"""
    s_and_b32 s57, s14, 3
    s_mul_i32 s53, s57, {2 * SL}
    v_and_b32 v2, 31, v1
    v_lshrrev_b32 v3, 5, v1
    v_bfe_u32 v4, v1, 1, 3
    v_lshlrev_b32 v5, 7, v2
    v_add_u32 v5, s53, v5
    """)
    for s in range(4):
        a(f"v_add_u32 v6, {2 * s}, v3")
        a("v_xor_b32 v6, v6, v4")
        a(f"v_lshl_add_u32 v{VXR0 + s}, v6, 4, v5")
        a(f"v_add_u32 v{VXR2 + s}, {2 * ST}, v{VXR0 + s}")
    a(f"""
    v_bfe_u32 v4, v1, 4, 1
    v_bfe_u32 v5, v1, 2, 2
    v_and_b32 v6, 3, v1
    v_mul_u32_u24 v7, {SL}, v3
    v_lshl_add_u32 v7, v6, 3, v7
    v_lshl_add_u32 v8, v5, 6, v7
    v_lshl_add_u32 v8, v4, 5, v8
    v_add_u32 v{VTR + 2}, 6144, v8
    v_lshl_add_u32 v7, v5, 7, v7
    v_add_u32 v7, 4096, v7
    v_and_b32 v5, 2, v5
    s_lshr_b32 s58, s14, 2
    s_lshl_b32 s59, s58, 1
    s_cmp_eq_u32 s37, 1
    s_cbranch_scc1 K1_TRB
    """)
    a("v_lshl_add_u32 v7, v4, 10, v7")
    a("v_xor_b32 v5, v5, v4")
    for j in range(2):
        a(f"s_add_u32 s53, s59, {j}")
        a("v_xor_b32 v8, s53, v5")
        a(f"v_lshl_add_u32 v{VTR + j}, v8, 5, v7")
    a("s_branch K1_TRD")
    a.label("K1_TRB")
    a("s_lshl_b32 s53, s58, 10")
    a("v_add_u32 v7, s53, v7")
    a("v_xor_b32 v5, v5, v4")
    a("v_xor_b32 v5, s58, v5")
    for j in range(2):
        a(f"v_xor_b32 v8, {2 * j}, v5")
        a(f"v_lshl_add_u32 v{VTR + j}, v8, 5, v7")
    a.label("K1_TRD")
    for st in (1, 2):
        for j in range(3):
            a(f"v_add_u32 v{VTR + 3 * st + j}, {st * ST}, v{VTR + j}")
    c1 = -2.0 * math.log2(math.e) * math.sqrt(2.0 / math.pi)
    c3 = c1 * 0.044715
    a(f"""
    v_mov_b32 v{VC3}, {f2u(c3):#x}
    v_mov_b32 v{VC3 + 1}, {f2u(c3):#x}
    v_mov_b32 v{VC1}, {f2u(c1):#x}
    v_mov_b32 v{VC1 + 1}, {f2u(c1):#x}
    v_mov_b32 v{VONE}, 1.0
    v_mov_b32 v{VONE + 1}, 1.0
    v_lshlrev_b32 v{VST}, 4, v1
    v_cmp_eq_u32 s[46:47], 28, v2
    s_cmp_ge_u32 s14, 4
    s_cbranch_scc1 K1_LOOP_Y
    s_cmp_lt_u32 s15, 16
    s_cbranch_scc1 K1_LOOP_XV
    """)

    def reads(k, ns):
        c, s = divmod(k, 4)
        st = c % 3
        b = k % 2
        base = VXR2 + s if st == 2 else VXR0 + s
        off = 0 if st == 2 else st * ST
        for r in range(2):
            a(f"ds_read_b128 {vr(XF + b * 8 + r * 4, 4)}, v{base} offset:{off + r * SL}")
        for j in range(ns):
            d = WF + b * 12 + j * 4
            o2 = 256 if j == 2 else 512
            a(f"ds_read_b64_tr_b16 {vr(d, 2)}, v{VTR + 3 * st + j} offset:{s * 2 * SL}")
            a(f"ds_read_b64_tr_b16 {vr(d + 2, 2)}, v{VTR + 3 * st + j} offset:{s * 2 * SL + o2}")

    def loop(ns, swap4):
        a("s_waitcnt vmcnt(14)")
        a("s_barrier")
        reads(0, ns)
        for k in range(28):
            a("s_waitcnt lgkmcnt(0)")
            if k + 1 < 28:
                c = (k + 1) // 4
                if (k + 1) % 4 == 0:
                    a(f"s_waitcnt vmcnt({0 if c == 6 else 7})")
                    a("s_barrier")
                reads(k + 1, ns)
                if (k + 1) % 4 == 0 and c + 2 <= 6:
                    dma(c + 2)
            b = k % 2
            for j in range(ns):
                for r in range(2):
                    d = ACC + (j * 2 + r) * 16
                    w = WF + b * 12 + j * 4
                    x = XF + b * 8 + r * 4
                    if j == 2 and swap4:
                        mfma(a, d, x, w, None if k == 0 else d)
                    else:
                        mfma(a, d, w, x, None if k == 0 else d)

    a.label("K1_LOOP_XN")
    loop(3, False)
    a("s_branch K1_EPI")
    a.label("K1_LOOP_XV")
    loop(3, True)
    a("s_branch K1_EPI")
    a.label("K1_LOOP_Y")
    loop(2, False)
    a.label("K1_EPI")
    a("""
    s_lshl_b32 s60, s36, 3
    s_lshl_b32 s53, s57, 1
    s_add_u32 s60, s60, s53
    s_nop 15
    """)
    T = XF

    def epi_ffn(d, rt_add, j):
        a(f"s_add_u32 s53, s60, {rt_add}")
        a("s_mul_i32 s53, s53, 112")
        a("s_lshl_b32 s54, s15, 2")
        a("s_add_u32 s53, s53, s54")
        a("s_add_u32 s53, s53, s59")
        a(f"s_add_u32 s53, s53, {j}")
        a("s_lshl_b32 s53, s53, 10")
        a(f"s_add_u32 s53, s53, {WS_H}")
        o = T + 16 + ((rt_add + 2 * j) % 2) * 4
        for p in range(4):
            a(f"v_pk_mul_f32 {vr(T + 2 * p, 2)}, {vr(d + 2 * p, 2)}, {vr(d + 2 * p, 2)}")
        for p in range(4):
            a(f"v_pk_fma_f32 {vr(T + 2 * p, 2)}, {vr(T + 2 * p, 2)}, {vr(VC3, 2)}, {vr(VC1, 2)}")
        for p in range(4):
            a(f"v_pk_mul_f32 {vr(T + 2 * p, 2)}, {vr(T + 2 * p, 2)}, {vr(d + 2 * p, 2)}")
        for p in range(8):
            a(f"v_exp_f32 v{T + p}, v{T + p}")
        for p in range(4):
            a(f"v_pk_mul_f32 {vr(T + 8 + 2 * p, 2)}, {vr(d + 2 * p, 2)}, {vr(d + 8 + 2 * p, 2)}")
        for p in range(4):
            a(f"v_pk_add_f32 {vr(T + 2 * p, 2)}, {vr(T + 2 * p, 2)}, {vr(VONE, 2)}")
        for p in range(8):
            a(f"v_rcp_f32 v{T + p}, v{T + p}")
        a("s_nop 0")
        for p in range(4):
            a(f"v_pk_mul_f32 {vr(T + 2 * p, 2)}, {vr(T + 2 * p, 2)}, {vr(T + 8 + 2 * p, 2)}")
        for p in range(4):
            a(f"v_cvt_pk_bf16_f32 v{o + p}, v{T + 2 * p}, v{T + 2 * p + 1}")
        a(f"buffer_store_dwordx4 {vr(o, 4)}, v{VST}, s[32:35], s53 offen")

    qscale = math.log2(math.e) / math.sqrt(28.0)

    def epi_qk(d, rt_add, qi_sreg, qi_add):
        a(f"s_add_u32 s61, s{qi_sreg}, {qi_add}")
        a("s_and_b32 s53, s61, 15")
        a("s_lshl_b32 s53, s53, 6")
        a("s_add_u32 s53, s53, s60")
        a(f"s_add_u32 s53, s53, {rt_add}")
        a("s_cmp_lt_u32 s61, 16")
        a(f"s_cselect_b32 s62, {f2u(qscale):#x}, 1.0")
        a("s_mov_b32 s63, s62")
        a("s_cselect_b32 s64, 0, 0x3f80")
        a("s_cselect_b32 s54, 11, 12")
        a(f"s_cselect_b32 s65, {WS_Q}, {WS_KV}")
        a("s_lshl_b32 s53, s53, s54")
        a("s_add_u32 s53, s53, s65")
        o = T + 16 + (rt_add % 2) * 8
        for p in range(8):
            a(f"v_pk_mul_f32 {vr(d + 2 * p, 2)}, {vr(d + 2 * p, 2)}, s[62:63]")
        a(f"v_mov_b32 v{T}, s64")
        for p in range(8):
            a(f"v_cvt_pk_bf16_f32 v{o + p}, v{d + 2 * p}, v{d + 2 * p + 1}")
        a(f"v_cndmask_b32 v{o + 6}, v{o + 6}, v{T}, s[44:45]")
        a(f"v_cndmask_b32 v{o + 7}, v{o + 7}, 0, s[44:45]")
        a(f"buffer_store_dwordx4 {vr(o, 4)}, v{VST}, s[32:35], s53 offen")
        a(f"buffer_store_dwordx4 {vr(o + 4, 4)}, v{VST}, s[32:35], s53 offen offset:1024")

    def epi_v(d, rt_add):
        a("s_lshl_b32 s53, s15, 6")
        a("s_add_u32 s53, s53, s60")
        a(f"s_add_u32 s53, s53, {rt_add}")
        a("s_lshl_b32 s53, s53, 12")
        a(f"s_add_u32 s53, s53, {WS_KV + 2048}")
        o = T + 16 + (rt_add % 2) * 8
        a(f"v_mov_b32 v{T}, 0x3f803f80")
        for p in range(8):
            a(f"v_cvt_pk_bf16_f32 v{o + p}, v{d + 2 * p}, v{d + 2 * p + 1}")
        for p in range(8):
            a(f"v_cndmask_b32 v{o + p}, v{o + p}, v{T}, s[46:47]")
        a(f"buffer_store_dwordx4 {vr(o, 4)}, v{VST}, s[32:35], s53 offen")
        a(f"buffer_store_dwordx4 {vr(o + 4, 4)}, v{VST}, s[32:35], s53 offen offset:1024")

    a("s_cmp_ge_u32 s14, 4")
    a("s_cbranch_scc1 K1_EPI01")
    a("s_cmp_lt_u32 s15, 16")
    a("s_cbranch_scc1 K1_EPIV")
    for r in range(2):
        epi_qk(ACC + (4 + r) * 16, r, 52, 0)
    a("s_branch K1_EPI01")
    a.label("K1_EPIV")
    for r in range(2):
        epi_v(ACC + (4 + r) * 16, r)
    a.label("K1_EPI01")
    a("s_cmp_eq_u32 s37, 1")
    a("s_cbranch_scc1 K1_EPIB")
    for j in range(2):
        for r in range(2):
            epi_ffn(ACC + (j * 2 + r) * 16, r, j)
    a("s_endpgm")
    a.label("K1_EPIB")
    a("s_add_u32 s66, s49, s59")
    for j in range(2):
        for r in range(2):
            epi_qk(ACC + (j * 2 + r) * 16, r, 66, j)
    a.label("K1_END")
    a("s_endpgm")
    return kernel_desc("k1_proj_kernel", 180)


def gemm_tr_addr(a, vdst, s_base):
    a(f"""
    v_lshrrev_b32 v3, 5, v1
    v_bfe_u32 v4, v1, 4, 1
    v_bfe_u32 v5, v1, 2, 2
    v_and_b32 v6, 3, v1
    v_lshl_add_u32 v7, v3, 2, v5
    v_lshlrev_b32 v7, 7, v7
    v_lshl_add_u32 v7, v6, 3, v7
    v_add_u32 v7, s{s_base}, v7
    v_and_b32 v5, 2, v5
    v_xor_b32 v5, v5, v4
    v_lshl_add_u32 v{vdst}, v5, 5, v7
    v_xor_b32 v5, 2, v5
    v_lshl_add_u32 v{vdst + 1}, v5, 5, v7
    """)


def gemm_w_voff(a, vdst, s_cb):
    a(f"""
    v_lshrrev_b32 v3, 3, v1
    v_bfe_u32 v4, v1, 1, 2
    v_and_b32 v5, 2, v3
    v_xor_b32 v4, v4, v5
    v_and_b32 v5, 1, v1
    v_mul_u32_u24 v6, 896, v3
    v_lshl_add_u32 v6, v4, 5, v6
    v_lshl_add_u32 v6, v5, 4, v6
    s_lshl_b32 s53, s{s_cb}, 7
    v_add_u32 v{vdst}, s53, v6
    """)


def gemm_reduce(a, acc, tmp, v_own, v_rd, s_gw, lbl):
    for w in range(4):
        for q in range(4):
            a(f"ds_read_b128 {vr(acc + w * 16 + q * 4, 4)}, v{v_rd} offset:{w * 16384 + q * 1024}")
        if w == 2:
            a("s_waitcnt lgkmcnt(4)")
            for p in range(8):
                a(f"v_pk_add_f32 {vr(tmp + 2 * p, 2)}, {vr(acc + 2 * p, 2)}, {vr(acc + 16 + 2 * p, 2)}")
    a("s_waitcnt lgkmcnt(0)")
    for p in range(8):
        a(f"v_pk_add_f32 {vr(acc + 32 + 2 * p, 2)}, {vr(acc + 32 + 2 * p, 2)}, {vr(acc + 48 + 2 * p, 2)}")
    for p in range(8):
        a(f"v_pk_add_f32 {vr(tmp + 2 * p, 2)}, {vr(tmp + 2 * p, 2)}, {vr(acc + 32 + 2 * p, 2)}")


def gemm_reduce_write(a, acc, v_own):
    for t in range(4):
        for q in range(4):
            a(f"ds_write_b128 v{v_own}, {vr(acc + t * 16 + q * 4, 4)} offset:{t * 4096 + q * 1024}")


def gen_k2(a):
    kernel_head(a, "k2_attn_kernel")
    a("""
    s_cmp_ge_u32 s2, 256
    s_cbranch_scc1 K2_END
    s_load_dwordx2 s[12:13], s[0:1], 80
    s_load_dwordx2 s[4:5], s[0:1], 0
    s_load_dwordx4 s[8:11], s[0:1], 48
    v_lshrrev_b32 v2, 6, v0
    v_and_b32 v1, 63, v0
    s_and_b32 s3, s2, 7
    v_readfirstlane_b32 s14, v2
    s_lshr_b32 s36, s2, 3
    s_lshr_b32 s15, s36, 4
    s_lshl_b32 s37, s3, 1
    s_add_u32 s15, s15, s37
    s_and_b32 s37, s36, 15
    s_lshl_b32 s38, s15, 18
    s_add_u32 s38, s38, %d
    v_lshlrev_b32 v9, 4, v1
    s_mov_b32 s44, 0
    s_mov_b32 s45, -1
    s_waitcnt lgkmcnt(0)
    """ % WS_KV)
    srd(a, 32, 12, 13, WS_SIZE)
    a("s_cmp_ge_u32 s14, 8")
    a("s_cbranch_scc1 K2_GEMM")

    VCUR, VNEXT, VBASE = 2, 3, 4
    Q, K, V, S, P, O, T = 10, 18, 34, 66, 98, 106, 122
    a(f"""
    s_and_b32 s39, s14, 3
    s_lshl_b32 s40, s37, 2
    s_add_u32 s40, s40, s39
    s_lshl_b32 s41, s15, 6
    s_add_u32 s41, s41, s40
    s_lshl_b32 s41, s41, 11
    s_add_u32 s41, s41, {WS_Q}
    buffer_load_dwordx4 {vr(Q, 4)}, v9, s[32:35], s41 offen
    buffer_load_dwordx4 {vr(Q + 4, 4)}, v9, s[32:35], s41 offen offset:1024
    s_lshr_b32 s42, s14, 2
    s_lshl_b32 s43, s42, 12
    v_add_u32 v{VBASE}, s43, v9
    v_mov_b32 v{VCUR}, v{VBASE}
    v_add_u32 v{VNEXT}, 32768, v{VBASE}
    s_mov_b32 s46, 32768
    s_mov_b32 s47, 8
    s_barrier
    ds_read_b128 {vr(V + 24, 4)}, v9
    ds_read_b128 {vr(V + 28, 4)}, v9 offset:1024
    """)
    for t in range(2):
        for j in range(2):
            a(f"ds_read_b128 {vr(K + t * 8 + j * 4, 4)}, v{VCUR} offset:{t * 8192 + j * 1024}")
        for j in range(2):
            a(f"ds_read_b128 {vr(V + t * 8 + j * 4, 4)}, v{VCUR} offset:{t * 8192 + 2048 + j * 1024}")
    for r in range(16):
        a(f"v_mov_b32 v{O + r}, 0")
    a("s_waitcnt vmcnt(0) lgkmcnt(8)")
    mfma(a, S + 16, V + 24, Q, None)
    mfma(a, S + 16, V + 28, Q + 4, S + 16)
    a("s_nop 15")

    def rowmax(src, dst):
        a(f"v_max3_f32 v{dst}, v{src}, v{src + 1}, v{src + 2}")
        for r in range(3, 15, 2):
            a(f"v_max3_f32 v{dst}, v{dst}, v{src + r}, v{src + r + 1}")
        a(f"v_max_f32 v{dst}, v{dst}, v{src + 15}")

    def crossmax(dst, tmp):
        a(f"v_mov_b32 v{tmp}, v{dst}")
        a("s_nop 1")
        a(f"v_permlane32_swap_b32 v{dst}, v{tmp}")
        a("s_nop 1")
        a(f"v_max_f32 v{dst}, v{dst}, v{tmp}")

    rowmax(S + 16, T)
    crossmax(T, T + 1)
    a(f"""
    v_mov_b32 v{T + 1}, 0
    v_cvt_pk_bf16_f32 v{T}, -v{T}, v{T + 1}
    v_cndmask_b32 v{Q + 6}, v{Q + 6}, v{T}, s[44:45]
    s_waitcnt lgkmcnt(0)
    s_nop 0
    """)
    mfma(a, S, K, Q, None)
    mfma(a, S, K + 4, Q + 4, S)
    a("s_nop 15")
    a.label("K2_ALOOP")
    for u in range(4):
        sc = S + (u % 2) * 16
        sn = S + ((u + 1) % 2) * 16
        kn = K + ((u + 1) % 2) * 8
        a("s_waitcnt lgkmcnt(0)")
        if u == 2:
            a("s_barrier")
        va = VCUR if u < 2 else VNEXT
        off = ((u + 2) % 4) * 8192
        for j in range(2):
            a(f"ds_read_b128 {vr(K + (u % 2) * 8 + j * 4, 4)}, v{va} offset:{off + j * 1024}")
        for j in range(2):
            a(f"ds_read_b128 {vr(V + ((u + 2) % 4) * 8 + j * 4, 4)}, v{va} offset:{off + 2048 + j * 1024}")

        def e(i):
            a(f"v_exp_f32 v{sc + i}, v{sc + i}")

        def c(i):
            a(f"v_cvt_pk_bf16_f32 v{P + i}, v{sc + 2 * i}, v{sc + 2 * i + 1}")

        mfma(a, sn, kn, Q, None)
        for i in range(0, 4):
            e(i)
        mfma(a, sn, kn + 4, Q + 4, sn)
        for i in range(4, 8):
            e(i)
        for i in range(0, 4):
            c(i)
        e(8)
        e(9)
        mfma(a, O, V + u * 8, P, O)
        for i in range(10, 16):
            e(i)
        for i in range(4, 8):
            c(i)
        if u == 3:
            a(f"v_mov_b32 v{VCUR}, v{VNEXT}")
            a("s_add_u32 s46, s46, 32768")
            a("s_cmp_eq_u32 s46, 98304")
            a("s_cselect_b32 s46, 0, s46")
            a(f"v_add_u32 v{VNEXT}, s46, v{VBASE}")
            a("s_sub_u32 s47, s47, 1")
            a("s_cmp_lg_u32 s47, 0")
        else:
            a("s_nop 1")
        mfma(a, O, V + u * 8 + 4, P + 4, O)
    a("s_cbranch_scc1 K2_ALOOP")
    a(f"""
    s_lshl_b32 s43, s39, 12
    v_add_u32 v5, s43, v9
    s_waitcnt lgkmcnt(0)
    s_nop 11
    s_cmp_eq_u32 s42, 0
    s_cbranch_scc1 K2_AFIN
    """)
    for q in range(4):
        a(f"ds_write_b128 v5, {vr(O + 4 * q, 4)} offset:{q * 1024}")
    a("s_waitcnt lgkmcnt(0)")
    a("s_barrier")
    a("s_endpgm")
    a.label("K2_AFIN")
    a("s_barrier")
    for q in range(4):
        a(f"ds_read_b128 {vr(S + 4 * q, 4)}, v5 offset:{q * 1024}")
    a("s_waitcnt lgkmcnt(0)")
    for p in range(8):
        a(f"v_pk_add_f32 {vr(O + 2 * p, 2)}, {vr(O + 2 * p, 2)}, {vr(S + 2 * p, 2)}")

    def get_l():
        a(f"v_mov_b32 v{T}, v{O + 12}")
        a(f"v_mov_b32 v{T + 1}, v{O + 12}")
        a("s_nop 1")
        a(f"v_permlane32_swap_b32 v{T}, v{T + 1}")
        for r in range(12, 16):
            a(f"v_cndmask_b32 v{O + r}, v{O + r}, 0, s[44:45]")

    get_l()
    a(f"""
    v_mov_b32 v{T + 2}, 0
    v_mov_b32 v{T + 3}, 0
    v_mov_b32 v{T + 4}, 0
    v_mov_b32 v{T + 5}, 0
    """)
    for p in range(8):
        a(f"v_pk_fma_f32 {vr(T + 2, 2)}, {vr(O + 2 * p, 2)}, {vr(T + 4, 2)}, {vr(T + 2, 2)}")
    a(f"""
    v_add_f32 v{T + 2}, v{T + 2}, v{T + 3}
    s_mov_b32 s48, {f2u(2.0 ** -30):#x}
    s_mov_b32 s49, {f2u(2.0 ** 60):#x}
    v_cmp_eq_f32 s[50:51], 0, v{T + 2}
    v_cmp_le_f32 s[52:53], s48, v{T + 1}
    v_cmp_ge_f32 s[54:55], s49, v{T + 1}
    s_and_b64 s[50:51], s[50:51], s[52:53]
    s_and_b64 s[50:51], s[50:51], s[54:55]
    s_cmp_eq_u64 s[50:51], -1
    s_cbranch_scc0 K2_AFALL
    """)
    a.label("K2_ANORM")
    a(f"""
    v_rcp_f32 v{T + 2}, v{T + 1}
    s_lshl_b32 s43, s40, 5
    s_lshl_b32 s48, s15, 1
    s_add_u32 s43, s43, s48
    s_lshl_b32 s43, s43, 10
    s_add_u32 s43, s43, {WS_O}
    v_mov_b32 v{T + 3}, v{T + 2}
    """)
    for p in range(8):
        a(f"v_pk_mul_f32 {vr(O + 2 * p, 2)}, {vr(O + 2 * p, 2)}, {vr(T + 2, 2)}")
    for p in range(8):
        a(f"v_cvt_pk_bf16_f32 v{P + p}, v{O + 2 * p}, v{O + 2 * p + 1}")
    a(f"buffer_store_dwordx4 {vr(P, 4)}, v9, s[32:35], s43 offen")
    a(f"buffer_store_dwordx4 {vr(P + 4, 4)}, v9, s[32:35], s43 offen offset:1024")
    a("s_endpgm")
    a.label("K2_AFALL")
    a(f"""
    v_cndmask_b32 v{Q + 6}, v{Q + 6}, 0, s[44:45]
    v_mov_b32 v{T + 6}, 0xff800000
    s_mov_b32 s48, s38
    s_mov_b32 s47, 64
    """)
    a.label("K2_FL1")
    a(f"buffer_load_dwordx4 {vr(K, 4)}, v9, s[32:35], s48 offen")
    a(f"buffer_load_dwordx4 {vr(K + 4, 4)}, v9, s[32:35], s48 offen offset:1024")
    a("s_waitcnt vmcnt(0)")
    mfma(a, S, K, Q, None)
    mfma(a, S, K + 4, Q + 4, S)
    a("s_nop 15")
    rowmax(S, T + 7)
    a(f"""
    v_max_f32 v{T + 6}, v{T + 6}, v{T + 7}
    s_add_u32 s48, s48, 4096
    s_sub_u32 s47, s47, 1
    s_cmp_lg_u32 s47, 0
    s_cbranch_scc1 K2_FL1
    """)
    crossmax(T + 6, T + 7)
    for r in range(16):
        a(f"v_mov_b32 v{O + r}, 0")
    a("s_mov_b32 s48, s38")
    a("s_mov_b32 s47, 64")
    a.label("K2_FL2")
    a(f"buffer_load_dwordx4 {vr(K, 4)}, v9, s[32:35], s48 offen")
    a(f"buffer_load_dwordx4 {vr(K + 4, 4)}, v9, s[32:35], s48 offen offset:1024")
    a(f"buffer_load_dwordx4 {vr(V, 4)}, v9, s[32:35], s48 offen offset:2048")
    a(f"buffer_load_dwordx4 {vr(V + 4, 4)}, v9, s[32:35], s48 offen offset:3072")
    a("s_waitcnt vmcnt(0)")
    mfma(a, S, K, Q, None)
    mfma(a, S, K + 4, Q + 4, S)
    a("s_nop 15")
    for r in range(16):
        a(f"v_sub_f32 v{S + r}, v{S + r}, v{T + 6}")
    for r in range(16):
        a(f"v_exp_f32 v{S + r}, v{S + r}")
    a("s_nop 0")
    for p in range(8):
        a(f"v_cvt_pk_bf16_f32 v{P + p}, v{S + 2 * p}, v{S + 2 * p + 1}")
    a("s_nop 1")
    mfma(a, O, V, P, O)
    mfma(a, O, V + 4, P + 4, O)
    a("""
    s_add_u32 s48, s48, 4096
    s_sub_u32 s47, s47, 1
    s_cmp_lg_u32 s47, 0
    s_cbranch_scc1 K2_FL2
    s_nop 15
    """)
    get_l()
    a("s_branch K2_ANORM")

    a.label("K2_GEMM")
    VKV, VW, VTR, VOWN, VRD = 8, 10, 11, 13, 14
    ACC, H, WF = 16, 80, 144
    a(f"""
    s_setprio 2
    s_sub_u32 s39, s14, 8
    s_lshl_b32 s40, s39, 13
    v_add_u32 v{VKV}, s40, v9
    """)

    def kv(i):
        st = (i % 3) * 32768
        for half in range(2):
            a(f"s_add_u32 m0, s40, {st + half * 4096}")
            a(f"s_add_u32 s41, s38, {i * 32768 + half * 4096}")
            for j in range(4):
                a(f"buffer_load_dwordx4 v{VKV}, s[32:35], s41 offen offset:{j * 1024} lds")

    kv(0)
    a("s_cmp_ge_u32 s36, 28")
    a("s_cbranch_scc1 K2_GATE")
    a(f"""
    s_mul_i32 s42, s36, 37
    s_lshr_b32 s42, s42, 8
    s_mul_i32 s43, s42, 7
    s_sub_u32 s43, s36, s43
    s_lshl_b32 s46, s3, 2
    s_add_u32 s42, s42, s46
    s_lshl_b32 s46, s39, 14
    s_add_u32 s46, s46, 98304
    s_mul_i32 s47, s42, {2 * 112}
    s_mul_i32 s48, s39, 28
    s_add_u32 s47, s47, s48
    s_lshl_b32 s47, s47, 10
    s_add_u32 s47, s47, {WS_H}
    s_add_u32 s49, s47, {112 * 1024}
    s_mul_i32 s50, s39, {448 * 896}
    """)
    srd(a, 28, 8, 9, WD_BYTES)
    gemm_w_voff(a, VW, 43)

    def gload(i):
        hb = H + (i % 2) * 32
        for r, sreg in ((0, 47), (1, 49)):
            for s in range(4):
                a(f"buffer_load_dwordx4 {vr(hb + (s * 2 + r) * 4, 4)}, v9, s[32:35], s{sreg} offen offset:{s * 1024}")
            a(f"s_add_u32 s{sreg}, s{sreg}, 4096")
        for half in range(2):
            a(f"s_add_u32 m0, s46, {(i % 2) * 8192 + half * 4096}")
            for j in range(4):
                a(f"s_add_u32 s51, s50, {(i * 64 + half * 32) * 896 + j * 6144}")
                a(f"buffer_load_dwordx4 v{VW}, s[28:31], s51 offen offset:{j * 1024} lds")

    gload(0)
    kv(1)
    kv(2)
    gemm_tr_addr(a, VTR, 46)
    a(f"""
    v_add_u32 v{VOWN}, s46, v9
    s_lshl_b32 s53, s39, 12
    s_add_u32 s53, s53, 98304
    v_add_u32 v{VRD}, s53, v9
    s_waitcnt vmcnt(32)
    s_barrier
    """)

    def trd(i, s):
        b = WF + (s % 2) * 8
        for ct in range(2):
            o = (i % 2) * 8192 + s * 2048
            a(f"ds_read_b64_tr_b16 {vr(b + ct * 4, 2)}, v{VTR + ct} offset:{o}")
            a(f"ds_read_b64_tr_b16 {vr(b + ct * 4 + 2, 2)}, v{VTR + ct} offset:{o + 1024}")

    for i in range(7):
        n = 0
        if i >= 1 and i + 2 <= 7:
            kv(i + 2)
            n += 8
        if i + 1 <= 6:
            gload(i + 1)
            n += 16
        if i == 0:
            n = 32
        a(f"s_waitcnt vmcnt({n})")
        trd(i, 0)
        for s in range(4):
            a("s_waitcnt lgkmcnt(0)")
            if s < 3:
                trd(i, s + 1)
            hb = H + (i % 2) * 32
            for r in range(2):
                for ct in range(2):
                    d = ACC + (r * 2 + ct) * 16
                    mfma(a, d, WF + (s % 2) * 8 + ct * 4, hb + (s * 2 + r) * 4, None if (i == 0 and s == 0) else d)
        if i == 0:
            a("s_waitcnt vmcnt(24)")
        a("s_barrier")
    a("s_nop 15")
    gemm_reduce_write(a, ACC, VOWN)
    a("s_waitcnt lgkmcnt(0)")
    a("s_barrier")
    gemm_reduce(a, ACC, H, VOWN, VRD, 39, "K2")
    a(f"""
    s_mul_i32 s53, s42, 7
    s_add_u32 s53, s53, s43
    s_lshl_b32 s53, s53, 2
    s_add_u32 s53, s53, s39
    s_lshl_b32 s53, s53, 12
    s_add_u32 s53, s53, {WS_B}
    """)
    for q in range(4):
        a(f"buffer_store_dwordx4 {vr(H + 4 * q, 4)}, v9, s[32:35], s53 offen offset:{q * 1024}")
    a("s_endpgm")

    a.label("K2_GATE")
    XR, GR = 16, 72
    kv(1)
    kv(2)
    srd(a, 24, 4, 5, X_BYTES)
    srd(a, 28, 10, 11, GW_BYTES)
    a(f"""
    s_lshl_b32 s42, s3, 2
    s_add_u32 s42, s42, s36
    s_sub_u32 s42, s42, 28
    s_lshl_b32 s42, s42, 6
    s_lshl_b32 s43, s39, 4
    s_add_u32 s42, s42, s43
    v_lshrrev_b32 v2, 2, v1
    v_add_u32 v2, s42, v2
    v_and_b32 v3, 3, v1
    v_lshlrev_b32 v3, 4, v3
    v_mul_u32_u24 v4, 896, v2
    v_add_u32 v4, v4, v3
    """)
    for j in range(14):
        a(f"buffer_load_dwordx4 {vr(XR + 4 * j, 4)}, v4, s[24:27], 0 offen offset:{64 * j}")
    for j in range(14):
        a(f"buffer_load_dwordx4 {vr(GR + 4 * j, 4)}, v3, s[28:31], 0 offen offset:{64 * j}")
    a("""
    s_waitcnt vmcnt(44)
    s_barrier
    v_mov_b32 v5, 0
    s_waitcnt vmcnt(0)
    """)
    for j in range(56):
        a(f"v_dot2c_f32_bf16 v5, v{XR + j}, v{GR + j}")
    a(f"""
    s_nop 3
    v_add_f32_dpp v5, v5, v5 quad_perm:[1,0,3,2] row_mask:0xf bank_mask:0xf
    s_nop 1
    v_add_f32_dpp v5, v5, v5 quad_perm:[2,3,0,1] row_mask:0xf bank_mask:0xf
    v_mul_f32 v5, {f2u(-math.log2(math.e)):#x}, v5
    v_exp_f32 v5, v5
    s_nop 0
    v_add_f32 v5, 1.0, v5
    v_rcp_f32 v5, v5
    v_lshlrev_b32 v2, 2, v2
    v_cmp_eq_u32 vcc, 0, v3
    s_mov_b32 s43, {WS_G}
    s_and_saveexec_b64 s[46:47], vcc
    buffer_store_dword v5, v2, s[32:35], s43 offen
    s_mov_b64 exec, -1
    s_barrier
    """)
    for i in range(1, 8):
        if i + 2 <= 7:
            kv(i + 2)
            a("s_waitcnt vmcnt(8)")
        else:
            a("s_waitcnt vmcnt(0)")
        a("s_barrier")
    a.label("K2_END")
    a("s_endpgm")
    return kernel_desc("k2_attn_kernel", 168)


def gen_k3(a):
    kernel_head(a, "k3_out_kernel")
    VW, VTR, VOWN, VRD, VG, VO = 10, 11, 13, 14, 15, 8
    ACC, H, WF, B = 16, 80, 144, 160
    a(f"""
    s_cmp_ge_u32 s2, 224
    s_cbranch_scc1 K3_END
    s_load_dwordx2 s[12:13], s[0:1], 80
    s_load_dwordx2 s[8:9], s[0:1], 16
    s_load_dwordx2 s[10:11], s[0:1], 64
    v_lshrrev_b32 v2, 6, v0
    v_and_b32 v1, 63, v0
    s_and_b32 s3, s2, 7
    v_readfirstlane_b32 s39, v2
    s_lshr_b32 s36, s2, 3
    s_mul_i32 s42, s36, 37
    s_lshr_b32 s42, s42, 8
    s_mul_i32 s43, s42, 7
    s_sub_u32 s43, s36, s43
    s_lshl_b32 s46, s3, 2
    s_add_u32 s42, s42, s46
    s_lshl_b32 s46, s39, 14
    v_lshlrev_b32 v9, 4, v1
    s_lshl_b32 s47, s42, 6
    s_lshl_b32 s48, s39, 3
    s_add_u32 s47, s47, s48
    s_lshl_b32 s47, s47, 10
    s_add_u32 s47, s47, {WS_O}
    s_mul_i32 s50, s39, {112 * 896}
    """)
    gemm_w_voff(a, VW, 43)
    a("s_waitcnt lgkmcnt(0)")
    srd(a, 32, 12, 13, WS_SIZE)
    srd(a, 28, 8, 9, WO_BYTES)
    srd(a, 24, 10, 11, X_BYTES)
    for half in range(2):
        for g4 in range(2):
            a(f"s_add_u32 m0, s46, {(half * 2 + g4) * 4096}")
            for j in range(4):
                if half == 1 and g4 == 1 and j == 3:
                    continue
                a(f"s_add_u32 s51, s50, {(half * 2 + g4) * 32 * 896 + j * 6144}")
                a(f"buffer_load_dwordx4 v{VW}, s[28:31], s51 offen offset:{j * 1024} lds")
        for r in range(2):
            a(f"s_add_u32 s48, s47, {r * 32768 + half * 4096}")
            for s in range(4):
                a(f"buffer_load_dwordx4 {vr(H + ((half * 4 + s) * 2 + r) * 4, 4)}, v9, s[32:35], s48 offen offset:{s * 1024}")
    a(f"""
    s_mul_i32 s53, s42, 7
    s_add_u32 s53, s53, s43
    s_lshl_b32 s53, s53, 2
    s_add_u32 s53, s53, s39
    s_lshl_b32 s53, s53, 12
    s_add_u32 s53, s53, {WS_B}
    """)
    for q in range(4):
        a(f"buffer_load_dwordx4 {vr(B + 4 * q, 4)}, v9, s[32:35], s53 offen offset:{q * 1024}")
    a(f"""
    s_lshr_b32 s54, s39, 1
    s_and_b32 s55, s39, 1
    s_lshl_b32 s56, s42, 1
    s_add_u32 s56, s56, s54
    s_lshl_b32 s56, s56, 5
    v_and_b32 v2, 31, v1
    v_add_u32 v2, s56, v2
    v_lshlrev_b32 v3, 2, v2
    s_mov_b32 s57, {WS_G}
    buffer_load_dword v{VG}, v3, s[32:35], s57 offen
    v_mul_u32_u24 v{VO}, 896, v2
    v_lshrrev_b32 v3, 5, v1
    v_lshl_add_u32 v{VO}, v3, 4, v{VO}
    s_lshl_b32 s58, s43, 7
    s_lshl_b32 s59, s55, 6
    s_add_u32 s58, s58, s59
    """)
    gemm_tr_addr(a, VTR, 46)
    a(f"""
    v_add_u32 v{VOWN}, s46, v9
    s_lshl_b32 s53, s39, 12
    v_add_u32 v{VRD}, s53, v9
    """)

    def trd(k):
        b = WF + (k % 2) * 8
        row = 28 * (k // 2) + 16 * (k % 2)
        for ct in range(2):
            a(f"ds_read_b64_tr_b16 {vr(b + ct * 4, 2)}, v{VTR + ct} offset:{row * 128}")
            a(f"ds_read_b64_tr_b16 {vr(b + ct * 4 + 2, 2)}, v{VTR + ct} offset:{row * 128 + 1024}")

    a("s_waitcnt vmcnt(20)")
    trd(0)
    for k in range(8):
        if k == 3:
            a("s_waitcnt vmcnt(5)")
        a("s_waitcnt lgkmcnt(0)")
        if k < 7:
            trd(k + 1)
        for r in range(2):
            for ct in range(2):
                d = ACC + (r * 2 + ct) * 16
                mfma(a, d, WF + (k % 2) * 8 + ct * 4, H + (k * 2 + r) * 4, None if k == 0 else d)
    a("s_nop 15")
    gemm_reduce_write(a, ACC, VOWN)
    a("s_waitcnt lgkmcnt(0)")
    a("s_barrier")
    gemm_reduce(a, ACC, H, VOWN, VRD, 39, "K3")
    a(f"""
    s_waitcnt vmcnt(0)
    v_sub_f32 v2, 1.0, v{VG}
    v_mov_b32 v3, v2
    v_mov_b32 v4, v{VG}
    v_mov_b32 v5, v{VG}
    """)
    for p in range(8):
        a(f"v_pk_mul_f32 {vr(B + 2 * p, 2)}, {vr(B + 2 * p, 2)}, v[2:3]")
    for p in range(8):
        a(f"v_pk_fma_f32 {vr(B + 2 * p, 2)}, {vr(H + 2 * p, 2)}, v[4:5], {vr(B + 2 * p, 2)}")
    for p in range(8):
        a(f"v_cvt_pk_bf16_f32 v{ACC + p}, v{B + 2 * p}, v{B + 2 * p + 1}")
    a("s_nop 1")
    for pr in range(2):
        a(f"v_permlane32_swap_b32 v{ACC + 4 * pr}, v{ACC + 4 * pr + 2}")
        a(f"v_permlane32_swap_b32 v{ACC + 4 * pr + 1}, v{ACC + 4 * pr + 3}")
    for pr in range(2):
        a(f"buffer_store_dwordx4 {vr(ACC + 4 * pr, 4)}, v{VO}, s[24:27], s58 offen offset:{32 * pr}")
    a.label("K3_END")
    a("s_endpgm")
    return kernel_desc("k3_out_kernel", 176)


def main():
    ref = open(f"cdna_kernels/{NAME}.s.ref").read().split("\n")
    head = [l for l in ref if l.startswith(";") and "@launch" not in l and "Override" not in l and "grid=ceil" not in l]
    a = Asm()
    for l in head:
        a.raw(l)
    a.raw(f"; @launch kernel=k1_proj_kernel grid=(256,1,1) block=(512,1,1) lds={3 * K1_ST}")
    a.raw("; @launch kernel=k2_attn_kernel grid=(256,1,1) block=(768,1,1) lds=163840")
    a.raw("; @launch kernel=k3_out_kernel grid=(224,1,1) block=(256,1,1) lds=65536")
    a.raw('.amdgcn_target "amdgcn-amd-amdhsa--gfx950"')
    a.raw(".text")
    descs = [gen_k1(a), gen_k2(a), gen_k3(a)]
    a.raw('.section .rodata,"a"')
    out = a.text() + "".join(descs)
    path = sys.argv[1] if len(sys.argv) > 1 else f"cdna_kernels/{NAME}.s"
    open(path, "w").write(out)


if __name__ == "__main__":
    main()
```

```python
import math
import os
import struct
import sys

NAME = "gated_mix__mha_block__geglu_ffn__prompt"

WS_Q = 0
WS_KV = 2 << 20
WS_H = 6 << 20
WS_O = 14 << 20
WS_G = 20 << 20
WS_F = 21 << 20
FS = 4352
WS_FKV = WS_F
WS_FQ = WS_F + 64 * FS
WS_FG = WS_F + 80 * FS
WS_FH = WS_F + 112 * FS
WS_FO = WS_F + 240 * FS
WS_D = 23 << 20
WS_SIZE = 24 << 20

X_BYTES = 2048 * 448 * 2
WQKV_BYTES = 448 * 1344 * 2
WG_BYTES = 448 * 1792 * 2
WD_BYTES = 1792 * 448 * 2
WO_BYTES = 448 * 448 * 2
GW_BYTES = 448 * 2

BLK = 16384
FB = 7 * BLK
L_NONCE = 0
W_BLK = [8, 9, 7, 8, 9, 7, 8, 1, 0, 9, 7, 2, 8, 3]
W_ISSUE = [-2, -1, 0, 1, 2, 3, 4, 4, 4, 5, 6, 6, 8, 8]
P2_BARS = [0, 1, 2, 3, 4, 5, 6, 8, 10, 14]
RING = 98304

DIAG = False
OPT = {}

WS = "s[28:31]"
NONCE_V = 164
HP = 144


def f2u(x):
    return struct.unpack("<I", struct.pack("<f", x))[0]


class Asm:
    def __init__(self):
        self.L = []
        self.vm = []
        self.nlab = 0

    def __call__(self, s):
        for line in s.strip("\n").split("\n"):
            if line.strip():
                self.L.append("    " + line.strip())

    def label(self, s):
        self.L.append(s + ":")

    def raw(self, s):
        self.L.append(s)

    def text(self):
        return "\n".join(self.L) + "\n"

    def newlabel(self, p):
        self.nlab += 1
        return f"{p}_{self.nlab}"

    def vmem(self, s, tag):
        self(s)
        self.vm.append(tag)

    def vwait(self, *tags):
        last = -1
        for i, t in enumerate(self.vm):
            if t in tags:
                last = i
        if last < 0:
            return
        n = len(self.vm) - 1 - last
        assert n <= 63
        self(f"s_waitcnt vmcnt({n})")
        self.vm = self.vm[last + 1:]

    def vreset(self):
        self.vm = []


def vr(b, n):
    return f"v[{b}:{b + n - 1}]"


def stamp(a, i, real=False, grp=0):
    if DIAG and (grp == OPT.get("grp", 0) or i in (0, 1, 14, 15)):
        a(f"{'s_memrealtime' if real else 's_memtime'} s[{70 + 2 * i}:{71 + 2 * i}]")


def stamp_flush(a):
    if not DIAG:
        return
    stamp(a, 14)
    stamp(a, 15, True)
    a("s_waitcnt lgkmcnt(0)")
    a("s_mov_b64 exec, 1")
    for i in range(16):
        a(f"v_mov_b32 v{16 + i}, s{70 + 2 * i}")
    a("s_lshl_b32 s68, s2, 4")
    a("s_add_u32 s68, s68, s26")
    a("s_lshl_b32 s68, s68, 6")
    a(f"s_add_u32 s68, s68, {WS_D}")
    for q in range(4):
        a(f"buffer_store_dwordx4 {vr(16 + 4 * q, 4)}, off, {WS}, s68 offset:{16 * q}")


def srd(a, d, lo, nbytes):
    a(f"s_mov_b32 s{d}, s{lo}")
    a(f"s_and_b32 s{d + 1}, s{lo + 1}, 0xffff")
    a(f"s_mov_b32 s{d + 2}, {nbytes}")
    a(f"s_mov_b32 s{d + 3}, 0x20000")


def mfma(a, d, x, y, c):
    cs = "0" if c is None else vr(c, 16)
    a(f"v_mfma_f32_32x32x16_bf16 {vr(d, 16)}, {vr(x, 4)}, {vr(y, 4)}, {cs}")


def flag_store(a, sregs):
    a("s_mov_b64 exec, 1")
    for s in sregs:
        a.vmem(f"buffer_store_dwordx2 {vr(NONCE_V, 2)}, off, {WS}, s{s} sc1", "flag")
    a("s_mov_b64 exec, -1")


def poll(a, vaddr, soff, vtmp):
    lp, dn = a.newlabel("POLL"), a.newlabel("POLLD")
    a("s_mov_b32 s69, 0x40000")
    a.label(lp)
    a(f"buffer_load_dwordx2 {vr(vtmp, 2)}, v{vaddr}, {WS}, s{soff} offen sc1")
    a("s_waitcnt vmcnt(0)")
    a(f"v_cmp_eq_u64 vcc, s[50:51], {vr(vtmp, 2)}")
    a("s_sub_u32 s69, s69, 1")
    a(f"s_cbranch_scc1 {dn}")
    a("s_cmp_eq_u64 vcc, -1")
    a(f"s_cbranch_scc1 {dn}")
    a(f"s_sleep {OPT.get('sleep', 4)}")
    a(f"s_branch {lp}")
    a.label(dn)
    a.vreset()


def gen_prologue(a):
    a("""
    s_cmp_ge_u32 s2, 256
    s_cbranch_scc1 L_END
    """)
    stamp(a, 0)
    stamp(a, 1, True)
    a("""
    s_load_dwordx16 s[4:19], s[0:1], 0
    s_load_dwordx4 s[20:23], s[0:1], 64
    s_load_dwordx2 s[24:25], s[0:1], 80
    v_lshrrev_b32 v2, 6, v0
    v_and_b32 v1, 63, v0
    s_and_b32 s27, s2, 7
    v_readfirstlane_b32 s26, v2
    s_lshr_b32 s48, s2, 3
    s_and_b32 s56, s48, 7
    s_lshr_b32 s3, s27, 2
    s_lshl_b32 s3, s3, 3
    s_add_u32 s56, s56, s3
    s_lshr_b32 s57, s48, 3
    s_and_b32 s3, s27, 3
    s_lshl_b32 s3, s3, 2
    s_add_u32 s57, s57, s3
    s_cmp_ge_u32 s57, 14
    s_cselect_b32 s58, 1, 0
    s_mul_i32 s59, s57, 3
    v_lshlrev_b32 v9, 4, v1
    s_mov_b32 s52, 0
    s_mov_b32 s53, -1
    s_cmp_ge_u32 s26, 8
    s_cbranch_scc1 L_AUX
    """)


def gen_p1_compute(a):
    VXR, VT1, VT2 = 10, 18, 19
    XF, WF, AC1, AC2 = 24, 40, 56, 80
    NV = 150
    a(f"""
    s_and_b32 s49, s26, 3
    s_lshr_b32 s62, s26, 2
    s_lshl_b32 s61, s49, 12
    v_and_b32 v2, 31, v1
    v_lshrrev_b32 v3, 5, v1
    v_bfe_u32 v4, v1, 1, 3
    v_lshlrev_b32 v5, 7, v2
    v_add_u32 v5, s61, v5
    v_cmp_eq_u32 s[54:55], 28, v2
    """)
    for s in range(4):
        a(f"v_add_u32 v6, {2 * s}, v3")
        a("v_xor_b32 v6, v6, v4")
        a(f"v_lshl_add_u32 v{VXR + s}, v6, 4, v5")
        a(f"v_add_u32 v{VXR + 4 + s}, 65536, v{VXR + s}")
    a(f"""
    v_bfe_u32 v4, v1, 4, 1
    v_bfe_u32 v5, v1, 2, 2
    v_and_b32 v6, 3, v1
    v_lshlrev_b32 v6, 3, v6
    v_lshl_add_u32 v8, v3, 9, v6
    v_lshl_add_u32 v8, v5, 6, v8
    v_lshl_add_u32 v8, v4, 5, v8
    s_lshl_b32 s61, s62, 13
    s_add_u32 s61, s61, {FB}
    v_add_u32 v{VT1}, s61, v8
    v_lshl_add_u32 v7, v3, 10, v6
    v_lshl_add_u32 v7, v5, 7, v7
    v_lshl_add_u32 v7, v4, 13, v7
    s_lshl_b32 s61, s62, 12
    v_add_u32 v7, s61, v7
    v_and_b32 v5, 2, v5
    v_xor_b32 v5, v5, v4
    s_and_b32 s63, s26, 2
    v_xor_b32 v5, s63, v5
    v_lshl_add_u32 v{VT2}, v5, 5, v7
    v_xor_b32 v5, 1, v5
    v_lshl_add_u32 v{VT2 + 1}, v5, 5, v7
    v_add_u32 v{VT2 + 2}, {FB}, v{VT2}
    v_add_u32 v{VT2 + 3}, {FB}, v{VT2 + 1}
    v_mov_b32 v23, {L_NONCE}
    s_waitcnt lgkmcnt(0)
    """)
    srd(a, 28, 24, WS_SIZE)
    sk = a.newlabel("NSKIP")
    a(f"""
    s_cmp_lg_u32 s26, 7
    s_cbranch_scc1 {sk}
    s_memrealtime s[50:51]
    v_mov_b32 v{NV + 6}, 0
    v_mov_b32 v{NV + 7}, 0
    v_mov_b32 v{NV + 8}, 0
    s_waitcnt lgkmcnt(0)
    s_or_b32 s50, s50, 1
    v_mov_b32 v{NV + 4}, s50
    v_mov_b32 v{NV + 5}, s51
    s_mov_b64 exec, 1
    global_atomic_cmpswap_x2 {vr(NV, 2)}, v{NV + 8}, {vr(NV + 4, 4)}, s[22:23] sc0 sc1
    s_mov_b64 exec, -1
    """)
    a.label(sk)
    qscale = math.log2(math.e) / math.sqrt(28.0)
    a("""
    s_lshl_b32 s60, s62, 1
    s_add_u32 s60, s60, s59
    s_lshl_b32 s64, s56, 2
    s_add_u32 s64, s64, s49
    s_and_b32 s43, s26, 1
    s_lshl_b32 s43, s43, 13
    s_lshl_b32 s61, s49, 12
    s_sub_u32 s43, s43, s61
    """)
    def ft_addr(dst, j):
        a(f"s_add_u32 s66, s60, {j}")
        a(f"s_mul_i32 s44, s66, {FS}")
        a("s_lshl_b32 s3, s64, 3")
        a("s_add_u32 s44, s44, s3")
        a(f"s_add_u32 s44, s44, {WS_FQ}")
        a("s_and_b32 s45, s66, 15")
        a("s_lshl_b32 s45, s45, 2")
        a("s_bfe_u32 s3, s64, 0x20001")
        a("s_add_u32 s45, s45, s3")
        a(f"s_mul_i32 s45, s45, {FS}")
        a("s_lshr_b32 s3, s66, 5")
        a("s_lshl_b32 s3, s3, 3")
        a("s_lshr_b32 s61, s64, 3")
        a("s_add_u32 s3, s3, s61")
        a("s_lshl_b32 s3, s3, 1")
        a("s_and_b32 s61, s64, 1")
        a("s_add_u32 s3, s3, s61")
        a("s_lshl_b32 s3, s3, 3")
        a("s_add_u32 s45, s45, s3")
        a(f"s_add_u32 s45, s45, {WS_FKV}")
        a("s_cmp_lt_u32 s66, 16")
        a(f"s_cselect_b32 s{dst}, s44, s45")

    for j in range(2):
        ft_addr(40 + j, j)
        a("s_and_b32 s61, s66, 15")
        a("s_lshl_b32 s61, s61, 6")
        a("s_add_u32 s61, s61, s64")
        a("s_cmp_lt_u32 s66, 16")
        a(f"s_cselect_b32 s{32 + 2 * j}, {f2u(qscale):#x}, 1.0")
        a(f"s_mov_b32 s{33 + 2 * j}, s{32 + 2 * j}")
        a(f"s_cselect_b32 s{36 + j}, 0, 0x3f80")
        a("s_cselect_b32 s3, 11, 12")
        a(f"s_cselect_b32 s44, {WS_Q}, {WS_KV}")
        a("s_lshl_b32 s61, s61, s3")
        a(f"s_add_u32 s{38 + j}, s61, s44")
    a("""
    s_cmp_ge_u32 s26, 4
    s_cselect_b32 s41, s40, s41
    s_cbranch_scc1 P1_Y
    s_cmp_ge_u32 s60, 32
    s_cbranch_scc1 P1_XV
    """)

    def xaddr(c, s):
        return (VXR + s, c * BLK) if c < 4 else (VXR + 4 + s, c * BLK - 65536)

    def reads2(k):
        c, s = divmod(k, 4)
        b = k % 2
        reg, off = xaddr(c, s)
        for r in range(2):
            a(f"ds_read_b128 {vr(XF + b * 8 + r * 4, 4)}, v{reg} offset:{off + r * 4096}")
        blk = W_BLK[k // 2]
        base, o = (VT2, blk * BLK) if blk < 4 else (VT2 + 2, blk * BLK - FB)
        o += (k % 2) * 2048
        for j in range(2):
            d = WF + b * 8 + j * 4
            a(f"ds_read_b64_tr_b16 {vr(d, 2)}, v{base + j} offset:{o}")
            a(f"ds_read_b64_tr_b16 {vr(d + 2, 2)}, v{base + j} offset:{o + 512}")

    def reads1(k, ns):
        c, s = divmod(k, 4)
        b = k % 2
        reg, off = xaddr(c, s)
        a(f"ds_read_b128 {vr(XF + b * 8, 4)}, v{reg} offset:{off}")
        for j in range(ns):
            d = WF + b * 8 + j * 4
            o = (c % 3) * BLK + j * 4096 + s * 1024
            a(f"ds_read_b64_tr_b16 {vr(d, 2)}, v{VT1} offset:{o}")
            a(f"ds_read_b64_tr_b16 {vr(d + 2, 2)}, v{VT1} offset:{o + 256}")

    def pass1(ns, swap):
        stamp(a, 2)
        a("s_barrier")
        stamp(a, 3)
        reads1(0, ns)
        for k in range(28):
            a("s_waitcnt lgkmcnt(0)")
            if (k + 1) % 4 == 0 and k + 1 < 28:
                a("s_barrier")
            if k + 1 < 28:
                reads1(k + 1, ns)
            b = k % 2
            for j in range(ns):
                d = AC1 + j * 16
                w, x = WF + b * 8 + j * 4, XF + b * 8
                if swap:
                    mfma(a, d, x, w, None if k == 0 else d)
                else:
                    mfma(a, d, w, x, None if k == 0 else d)

    T = HP

    def epi_qk(d, j):
        sc = 32 + 2 * j
        for p in range(8):
            a(f"v_pk_mul_f32 {vr(d + 2 * p, 2)}, {vr(d + 2 * p, 2)}, s[{sc}:{sc + 1}]")
        a(f"v_mov_b32 v{T}, s{36 + j}")
        for p in range(8):
            a(f"v_cvt_pk_bf16_f32 v{d + p}, v{d + 2 * p}, v{d + 2 * p + 1}")
        a(f"v_cndmask_b32 v{d + 6}, v{d + 6}, v{T}, s[52:53]")
        a(f"v_cndmask_b32 v{d + 7}, v{d + 7}, 0, s[52:53]")
        a(f"buffer_store_dwordx4 {vr(d, 4)}, v9, {WS}, s{38 + j} offen sc1")
        a(f"buffer_store_dwordx4 {vr(d + 4, 4)}, v9, {WS}, s{38 + j} offen offset:1024 sc1")

    def epi_v(d, j):
        a(f"v_mov_b32 v{T}, 0x3f803f80")
        for p in range(8):
            a(f"v_cvt_pk_bf16_f32 v{d + p}, v{d + 2 * p}, v{d + 2 * p + 1}")
        for p in range(8):
            a(f"v_cndmask_b32 v{d + p}, v{d + p}, v{T}, s[54:55]")
        a(f"buffer_store_dwordx4 {vr(d, 4)}, v9, {WS}, s{38 + j} offen offset:2048 sc1")
        a(f"buffer_store_dwordx4 {vr(d + 4, 4)}, v9, {WS}, s{38 + j} offen offset:3072 sc1")

    def mid():
        a("s_barrier")
        stamp(a, 4)
        for i in range(8):
            a(f"v_add_u32 v{VXR + i}, s43, v{VXR + i}")
        reads2(0)

    for lab, ns, swap in (("P1_XN", 2, False), ("P1_XV", 2, True), ("P1_YN", 1, False), ("P1_YV", 1, True)):
        if lab == "P1_YN":
            a.label("P1_Y")
            a("s_cmp_ge_u32 s60, 32")
            a("s_cbranch_scc1 P1_YV")
        a.label(lab)
        pass1(ns, swap)
        mid()
        for j in range(ns):
            (epi_v if swap else epi_qk)(AC1 + j * 16, j)
        if lab != "P1_YV":
            a("s_branch P2_START")
    a.label("P2_START")

    a("s_cmp_eq_u32 s58, 1")
    a("s_cbranch_scc1 P2_IDLE")

    def hooks(j):
        if j == 2:
            sk = a.newlabel("NSKIP")
            a(f"""
            s_cmp_lg_u32 s26, 7
            s_cbranch_scc1 {sk}
            s_waitcnt vmcnt(2)
            v_cmp_eq_u64 vcc, 0, {vr(NV, 2)}
            s_nop 1
            v_cndmask_b32 v{NV}, v{NV}, v{NV + 4}, vcc
            v_cndmask_b32 v{NV + 1}, v{NV + 1}, v{NV + 5}, vcc
            s_mov_b64 exec, 1
            ds_write_b64 v23, {vr(NV, 2)}
            s_mov_b64 exec, -1
            """)
            a.label(sk)
        if j == 3:
            a(f"ds_read_b64 {vr(NONCE_V, 2)}, v23")
        if j == 6:
            a("s_waitcnt vmcnt(0)")
            flag_store(a, [40, 41])
            a.vreset()

    for k in range(28):
        a("s_waitcnt lgkmcnt(0)")
        bar = (k + 1) % 2 == 0 and (k + 1) // 2 in P2_BARS
        if bar:
            a("s_barrier")
            if (k + 1) // 2 <= 12:
                stamp(a, 1 + (k + 1) // 2, grp=1)
            if k + 1 == 28:
                stamp(a, 5)
        b = k % 2
        n0 = len(a.L)
        if k + 1 < 28:
            reads2(k + 1)
        rd = a.L[n0:]
        del a.L[n0:]
        n = 0
        for j in range(2):
            for r in range(2):
                d = AC2 + (j * 2 + r) * 16
                mfma(a, d, WF + b * 8 + j * 4, XF + b * 8 + r * 4, None if k == 0 else d)
                if n < 2:
                    a.L.extend(rd[3 * n:3 * n + 3])
                n += 1
        if bar:
            hooks((k + 1) // 2)
    stamp(a, 6)
    VC3, VC1, VONE = 10, 12, 14
    c1 = -2.0 * math.log2(math.e) * math.sqrt(2.0 / math.pi)
    c3 = c1 * 0.044715
    a(f"""
    s_lshl_b32 s65, s56, 1
    s_and_b32 s3, s26, 1
    s_add_u32 s65, s65, s3
    s_lshl_b32 s63, s57, 2
    s_lshr_b32 s3, s26, 1
    s_add_u32 s63, s63, s3
    s_mul_i32 s40, s65, 112
    s_add_u32 s40, s40, s63
    s_lshl_b32 s40, s40, 11
    s_add_u32 s40, s40, {WS_H}
    s_add_u32 s42, s40, {112 * 1024}
    s_mul_i32 s44, s63, 37
    s_lshr_b32 s44, s44, 9
    s_mul_i32 s45, s44, 14
    s_sub_u32 s45, s63, s45
    s_lshl_b32 s59, s65, 2
    s_add_u32 s59, s59, s44
    s_mul_i32 s59, s59, {FS}
    s_lshl_b32 s45, s45, 3
    s_add_u32 s59, s59, s45
    s_add_u32 s59, s59, {WS_FH}
    v_mov_b32 v{VC3}, {f2u(c3):#x}
    v_mov_b32 v{VC3 + 1}, {f2u(c3):#x}
    v_mov_b32 v{VC1}, {f2u(c1):#x}
    v_mov_b32 v{VC1 + 1}, {f2u(c1):#x}
    v_mov_b32 v{VONE}, 1.0
    v_mov_b32 v{VONE + 1}, 1.0
    """)
    T2 = XF

    def epi_ffn(d, r, j):
        T = T2
        o = HP + (r * 2 + j) * 4
        for p in range(4):
            a(f"v_pk_mul_f32 {vr(T + 2 * p, 2)}, {vr(d + 2 * p, 2)}, {vr(d + 2 * p, 2)}")
        for p in range(4):
            a(f"v_pk_fma_f32 {vr(T + 2 * p, 2)}, {vr(T + 2 * p, 2)}, {vr(VC3, 2)}, {vr(VC1, 2)}")
        for p in range(4):
            a(f"v_pk_mul_f32 {vr(T + 2 * p, 2)}, {vr(T + 2 * p, 2)}, {vr(d + 2 * p, 2)}")
        for p in range(8):
            a(f"v_exp_f32 v{T + p}, v{T + p}")
        for p in range(4):
            a(f"v_pk_mul_f32 {vr(T + 8 + 2 * p, 2)}, {vr(d + 2 * p, 2)}, {vr(d + 8 + 2 * p, 2)}")
        for p in range(4):
            a(f"v_pk_add_f32 {vr(T + 2 * p, 2)}, {vr(T + 2 * p, 2)}, {vr(VONE, 2)}")
        for p in range(8):
            a(f"v_rcp_f32 v{T + p}, v{T + p}")
        a("s_nop 0")
        for p in range(4):
            a(f"v_pk_mul_f32 {vr(T + 2 * p, 2)}, {vr(T + 2 * p, 2)}, {vr(T + 8 + 2 * p, 2)}")
        for p in range(4):
            a(f"v_cvt_pk_bf16_f32 v{o + p}, v{T + 2 * p}, v{T + 2 * p + 1}")
        a(f"buffer_store_dwordx4 {vr(o, 4)}, v9, {WS}, s{40 + 2 * r} offen offset:{j * 1024} sc1")

    for j in range(2):
        for r in range(2):
            epi_ffn(AC2 + (j * 2 + r) * 16, r, j)
    a("s_branch P1_DONE")
    a.label("P2_IDLE")
    a("s_waitcnt lgkmcnt(0)")
    a("s_cmp_ge_u32 s26, 2")
    a("s_cbranch_scc1 P2_IDLE2")
    srd(a, 32, 18, GW_BYTES)
    a(f"""
    v_lshrrev_b32 v3, 5, v1
    v_lshlrev_b32 v3, 4, v3
    s_and_b32 s3, s57, 1
    s_lshl_b32 s61, s3, 13
    s_lshl_b32 s44, s26, 12
    s_sub_u32 s61, s61, s44
    s_lshl_b32 s65, s56, 1
    s_add_u32 s65, s65, s3
    """)
    for i in range(8):
        a(f"v_add_u32 v{VXR + i}, s61, v{VXR + i}")
    GA = 24
    a("""
    s_lshr_b32 s68, s48, 3
    s_lshl_b32 s68, s68, 1
    s_and_b32 s3, s48, 7
    s_add_u32 s68, s68, s3
    s_sub_u32 s3, s68, 7
    s_cmp_ge_u32 s68, 7
    s_cselect_b32 s68, s3, s68
    s_lshl_b32 s68, s68, 7
    """)
    if OPT.get("norot"):
        a("s_mov_b32 s68, 0")
    for half in range(2):
        for kk in range(14):
            k = half * 14 + kk
            if k and k % 4 == 0:
                a("s_add_u32 s68, s68, 128")
                a("s_cmp_eq_u32 s68, 896")
                a("s_cselect_b32 s68, 0, s68")
            a(f"buffer_load_dwordx4 {vr(AC2 + 4 * kk, 4)}, v3, s[32:35], s68 offen offset:{(k % 4) * 32}")
        a("s_waitcnt vmcnt(0)")
        for kk in range(14):
            k = half * 14 + kk
            reg, off = xaddr(k // 4, k % 4)
            a(f"ds_read_b128 {vr(WF + (k % 2) * 4, 4)}, v{reg} offset:{off}")
            a("s_waitcnt lgkmcnt(0)")
            mfma(a, GA, AC2 + 4 * kk, WF + (k % 2) * 4, None if k == 0 else GA)
    a(f"""
    s_lshl_b32 s44, s65, 8
    s_lshl_b32 s3, s26, 7
    s_add_u32 s44, s44, s3
    s_add_u32 s44, s44, {WS_G}
    s_mul_i32 s42, s65, {FS}
    s_lshl_b32 s3, s26, 3
    s_add_u32 s42, s42, s3
    s_add_u32 s42, s42, {WS_FG}
    v_lshlrev_b32 v3, 2, v1
    s_nop 7
    v_mul_f32 v5, {f2u(-math.log2(math.e)):#x}, v{GA}
    v_exp_f32 v5, v5
    s_nop 0
    v_add_f32 v5, 1.0, v5
    v_rcp_f32 v5, v5
    s_mov_b64 exec, 0xffffffff
    s_nop 0
    buffer_store_dword v5, v3, {WS}, s44 offen sc1
    s_mov_b64 exec, -1
    """)
    a.label("P2_IDLE2")
    for j in P2_BARS[1:]:
        a("s_waitcnt lgkmcnt(0)")
        a("s_barrier")
        hooks(j)
        if j == 6:
            a("s_cmp_ge_u32 s26, 2")
            a("s_cbranch_scc1 P2_IDLE3")
            flag_store(a, [42])
            a.label("P2_IDLE3")
    a.label("P1_DONE")
    a.vreset()
    stamp(a, 7)


def gen_attention(a):
    VCUR, VNEXT, VBASE = 2, 3, 4
    Q, K, V, S, P, O, T = 10, 18, 34, 66, 98, 106, 122
    VG = 140
    a(f"""
    s_lshr_b32 s60, s48, 4
    s_lshl_b32 s3, s27, 1
    s_add_u32 s60, s60, s3
    s_and_b32 s61, s48, 15
    s_lshl_b32 s61, s61, 2
    s_add_u32 s61, s61, s49
    s_lshl_b32 s38, s60, 18
    s_add_u32 s38, s38, {WS_KV}
    s_lshl_b32 s41, s61, 7
    s_add_u32 s41, s41, {WS_G}
    v_and_b32 v6, 31, v1
    v_lshlrev_b32 v6, 2, v6
    s_lshl_b32 s3, s49, 14
    s_add_u32 s3, s3, {RING + 14336}
    v_add_u32 v5, s3, v9
    s_lshl_b32 s43, s62, 12
    v_add_u32 v{VBASE}, s43, v9
    v_mov_b32 v{VCUR}, v{VBASE}
    v_add_u32 v{VNEXT}, 32768, v{VBASE}
    s_mov_b32 s46, 32768
    s_mov_b32 s47, 8
    """)
    for r in range(16):
        a(f"v_mov_b32 v{O + r}, 0")
    stamp(a, 8)
    a(f"""
    s_barrier
    ds_read_b128 {vr(Q, 4)}, v5
    ds_read_b128 {vr(Q + 4, 4)}, v5 offset:1024
    ds_read_b128 {vr(V + 24, 4)}, v9
    ds_read_b128 {vr(V + 28, 4)}, v9 offset:1024
    """)
    for t in range(2):
        for j in range(2):
            a(f"ds_read_b128 {vr(K + t * 8 + j * 4, 4)}, v{VCUR} offset:{t * 8192 + j * 1024}")
        for j in range(2):
            a(f"ds_read_b128 {vr(V + t * 8 + j * 4, 4)}, v{VCUR} offset:{t * 8192 + 2048 + j * 1024}")
    a("s_waitcnt lgkmcnt(0)" if DIAG else "s_waitcnt lgkmcnt(8)")
    mfma(a, S + 16, V + 24, Q, None)
    mfma(a, S + 16, V + 28, Q + 4, S + 16)
    a("s_nop 15")

    def rowmax(src, dst):
        a(f"v_max3_f32 v{dst}, v{src}, v{src + 1}, v{src + 2}")
        for r in range(3, 15, 2):
            a(f"v_max3_f32 v{dst}, v{dst}, v{src + r}, v{src + r + 1}")
        a(f"v_max_f32 v{dst}, v{dst}, v{src + 15}")

    def crossmax(dst, tmp):
        a(f"v_mov_b32 v{tmp}, v{dst}")
        a("s_nop 1")
        a(f"v_permlane32_swap_b32 v{dst}, v{tmp}")
        a("s_nop 1")
        a(f"v_max_f32 v{dst}, v{dst}, v{tmp}")

    rowmax(S + 16, T)
    crossmax(T, T + 1)
    a(f"""
    v_mov_b32 v{T + 1}, 0
    v_cvt_pk_bf16_f32 v{T}, -v{T}, v{T + 1}
    v_cndmask_b32 v{Q + 6}, v{Q + 6}, v{T}, s[52:53]
    s_waitcnt lgkmcnt(0)
    s_nop 0
    """)
    mfma(a, S, K, Q, None)
    mfma(a, S, K + 4, Q + 4, S)
    for i in range(4):
        a(f"v_mov_b32 v{P + 4 + i}, 0")
        a(f"v_mov_b32 v{V + 28 + i}, 0")
    a("s_nop 7")
    PRIO = {2: 3, 3: 2, 0: 1, 1: 0} if not OPT.get("lad2") else {2: 2, 3: 1, 0: 1, 1: 0}
    stamp(a, 9)
    a.label("A_LOOP")
    for it, u in [(it, u) for it in range(8 if DIAG else 1) for u in range(4)]:
        sc = S + (u % 2) * 16
        sn = S + ((u + 1) % 2) * 16
        kn = K + ((u + 1) % 2) * 8
        a("s_waitcnt lgkmcnt(0)")
        if u == 2:
            a("s_barrier")
            if it in (0, 3, 7):
                stamp(a, {0: 10, 3: 11, 7: 12}[it])
        a(f"s_setprio {PRIO[u]}")
        va = VCUR if u < 2 else VNEXT
        off = ((u + 2) % 4) * 8192
        pu = (u - 1) % 4

        def e(*idx):
            for i in idx:
                a(f"v_exp_f32 v{sc + i}, v{sc + i}")

        def c(i):
            a(f"v_cvt_pk_bf16_f32 v{P + i}, v{sc + 2 * i}, v{sc + 2 * i + 1}")

        e(0, 1)
        mfma(a, O, V + pu * 8 + 4, P + 4, O)
        for j in range(2):
            a(f"ds_read_b128 {vr(K + (u % 2) * 8 + j * 4, 4)}, v{va} offset:{off + j * 1024}")
        e(2, 3)
        c(0)
        e(4, 5)
        c(1)
        mfma(a, sn, kn, Q, None)
        for j in range(2):
            a(f"ds_read_b128 {vr(V + ((u + 2) % 4) * 8 + j * 4, 4)}, v{va} offset:{off + 2048 + j * 1024}")
        e(6, 7)
        c(2)
        e(8)
        c(3)
        e(9)
        mfma(a, sn, kn + 4, Q + 4, sn)
        e(10, 11)
        c(4)
        e(12, 13)
        c(5)
        mfma(a, O, V + u * 8, P, O)
        e(14, 15)
        c(6)
        c(7)
        if u == 3:
            sk = a.newlabel("HFLAG")
            a("s_add_u32 s3, s47, s58")
            a("s_cmp_lg_u32 s3, 8")
            a(f"s_cbranch_scc1 {sk}")
            a("s_cmp_eq_u32 s58, 1")
            a(f"s_cbranch_scc1 {sk}")
            a("s_waitcnt vmcnt(0)")
            flag_store(a, [59])
            a.label(sk)
            sk = a.newlabel("GLOAD")
            a("s_cmp_lg_u32 s47, 2")
            a(f"s_cbranch_scc1 {sk}")
            a(f"buffer_load_dword v{VG}, v6, {WS}, s41 offen sc1")
            a.label(sk)
            a(f"v_mov_b32 v{VCUR}, v{VNEXT}")
            a("s_add_u32 s46, s46, 32768")
            a("s_cmp_eq_u32 s46, 98304")
            a("s_cselect_b32 s46, 0, s46")
            a(f"v_add_u32 v{VNEXT}, s46, v{VBASE}")
            a("s_sub_u32 s47, s47, 1")
            a("s_cmp_lg_u32 s47, 0")
    a("s_cbranch_scc1 A_LOOP")
    mfma(a, O, V + 28, P + 4, O)
    stamp(a, 13)
    a(f"""
    s_lshl_b32 s43, s49, 12
    s_add_u32 s43, s43, 32768
    v_add_u32 v5, s43, v9
    s_waitcnt lgkmcnt(0)
    s_nop 11
    s_cmp_eq_u32 s62, 0
    s_cbranch_scc1 A_FIN
    """)
    for q in range(4):
        a(f"ds_write_b128 v5, {vr(O + 4 * q, 4)} offset:{q * 1024}")
    a("s_waitcnt lgkmcnt(0)")
    a("s_barrier")
    stamp_flush(a)
    a("s_endpgm")
    a.label("A_FIN")
    a("s_barrier")
    for q in range(4):
        a(f"ds_read_b128 {vr(S + 4 * q, 4)}, v5 offset:{q * 1024}")
    a("s_waitcnt lgkmcnt(0)")
    for p in range(8):
        a(f"v_pk_add_f32 {vr(O + 2 * p, 2)}, {vr(O + 2 * p, 2)}, {vr(S + 2 * p, 2)}")

    def get_l():
        a(f"v_mov_b32 v{T}, v{O + 12}")
        a(f"v_mov_b32 v{T + 1}, v{O + 12}")
        a("s_nop 1")
        a(f"v_permlane32_swap_b32 v{T}, v{T + 1}")
        for r in range(12, 16):
            a(f"v_cndmask_b32 v{O + r}, v{O + r}, 0, s[52:53]")

    get_l()
    a(f"""
    v_mov_b32 v{T + 2}, 0
    v_mov_b32 v{T + 3}, 0
    v_mov_b32 v{T + 4}, 0
    v_mov_b32 v{T + 5}, 0
    """)
    for p in range(8):
        a(f"v_pk_fma_f32 {vr(T + 2, 2)}, {vr(O + 2 * p, 2)}, {vr(T + 4, 2)}, {vr(T + 2, 2)}")
    a(f"""
    v_add_f32 v{T + 2}, v{T + 2}, v{T + 3}
    s_mov_b32 s44, {f2u(2.0 ** -30):#x}
    s_mov_b32 s45, {f2u(2.0 ** 60):#x}
    v_cmp_eq_f32 s[64:65], 0, v{T + 2}
    v_cmp_le_f32 s[66:67], s44, v{T + 1}
    v_cmp_ge_f32 vcc, s45, v{T + 1}
    s_and_b64 s[64:65], s[64:65], s[66:67]
    s_and_b64 s[64:65], s[64:65], vcc
    s_cmp_eq_u64 s[64:65], -1
    s_cbranch_scc0 A_FALL
    """)
    a.label("A_NORM")
    a(f"""
    v_rcp_f32 v{T + 2}, v{T + 1}
    s_lshl_b32 s43, s61, 4
    s_add_u32 s43, s43, s60
    s_lshl_b32 s44, s43, 11
    s_add_u32 s44, s44, {WS_O}
    s_lshr_b32 s45, s61, 1
    s_lshl_b32 s45, s45, 2
    s_lshr_b32 s43, s60, 2
    s_add_u32 s45, s45, s43
    s_mul_i32 s45, s45, {FS}
    s_and_b32 s43, s61, 1
    s_lshl_b32 s43, s43, 2
    s_and_b32 s3, s60, 3
    s_add_u32 s43, s43, s3
    s_lshl_b32 s43, s43, 3
    s_add_u32 s45, s45, s43
    s_add_u32 s45, s45, {WS_FO}
    s_waitcnt vmcnt(0)
    v_mul_f32 v{T + 2}, v{T + 2}, v{VG}
    v_mov_b32 v{T + 3}, v{T + 2}
    """)
    for p in range(8):
        a(f"v_pk_mul_f32 {vr(O + 2 * p, 2)}, {vr(O + 2 * p, 2)}, {vr(T + 2, 2)}")
    for p in range(8):
        a(f"v_cvt_pk_bf16_f32 v{P + p}, v{O + 2 * p}, v{O + 2 * p + 1}")
    a(f"buffer_store_dwordx4 {vr(P, 4)}, v9, {WS}, s44 offen sc1")
    a(f"buffer_store_dwordx4 {vr(P + 4, 4)}, v9, {WS}, s44 offen offset:1024 sc1")
    a("s_waitcnt vmcnt(0)")
    flag_store(a, [45])
    a.vreset()
    stamp_flush(a)
    a("s_endpgm")
    a.label("A_FALL")
    a(f"""
    v_cndmask_b32 v{Q + 6}, v{Q + 6}, 0, s[52:53]
    v_mov_b32 v{T + 6}, 0xff800000
    s_mov_b32 s44, s38
    s_mov_b32 s47, 64
    """)
    a.label("A_FL1")
    a(f"buffer_load_dwordx4 {vr(K, 4)}, v9, {WS}, s44 offen sc1")
    a(f"buffer_load_dwordx4 {vr(K + 4, 4)}, v9, {WS}, s44 offen offset:1024 sc1")
    a("s_waitcnt vmcnt(0)")
    mfma(a, S, K, Q, None)
    mfma(a, S, K + 4, Q + 4, S)
    a("s_nop 15")
    rowmax(S, T + 7)
    a(f"""
    v_max_f32 v{T + 6}, v{T + 6}, v{T + 7}
    s_add_u32 s44, s44, 4096
    s_sub_u32 s47, s47, 1
    s_cmp_lg_u32 s47, 0
    s_cbranch_scc1 A_FL1
    """)
    crossmax(T + 6, T + 7)
    for r in range(16):
        a(f"v_mov_b32 v{O + r}, 0")
    a("s_mov_b32 s44, s38")
    a("s_mov_b32 s47, 64")
    a.label("A_FL2")
    a(f"buffer_load_dwordx4 {vr(K, 4)}, v9, {WS}, s44 offen sc1")
    a(f"buffer_load_dwordx4 {vr(K + 4, 4)}, v9, {WS}, s44 offen offset:1024 sc1")
    a(f"buffer_load_dwordx4 {vr(V, 4)}, v9, {WS}, s44 offen offset:2048 sc1")
    a(f"buffer_load_dwordx4 {vr(V + 4, 4)}, v9, {WS}, s44 offen offset:3072 sc1")
    a("s_waitcnt vmcnt(0)")
    mfma(a, S, K, Q, None)
    mfma(a, S, K + 4, Q + 4, S)
    a("s_nop 15")
    for r in range(16):
        a(f"v_sub_f32 v{S + r}, v{S + r}, v{T + 6}")
    for r in range(16):
        a(f"v_exp_f32 v{S + r}, v{S + r}")
    a("s_nop 0")
    for p in range(8):
        a(f"v_cvt_pk_bf16_f32 v{P + p}, v{S + 2 * p}, v{S + 2 * p + 1}")
    a("s_nop 1")
    mfma(a, O, V, P, O)
    mfma(a, O, V + 4, P + 4, O)
    a("""
    s_add_u32 s44, s44, 4096
    s_sub_u32 s47, s47, 1
    s_cmp_lg_u32 s47, 0
    s_cbranch_scc1 A_FL2
    s_nop 15
    """)
    get_l()
    a("s_branch A_NORM")


def gen_aux(a):
    a.label("L_AUX")
    VXE, VXO, VC, VF = 10, 11, 12, 13
    a(f"""
    s_setprio 3
    s_sub_u32 s49, s26, 8
    s_lshl_b32 s3, s56, 7
    s_lshl_b32 s66, s49, 5
    s_add_u32 s3, s3, s66
    v_lshrrev_b32 v2, 3, v1
    v_and_b32 v3, 7, v1
    v_lshrrev_b32 v4, 4, v1
    v_add_u32 v5, s3, v2
    v_mul_u32_u24 v5, 896, v5
    v_xor_b32 v6, v3, v4
    v_lshl_add_u32 v{VXE}, v6, 4, v5
    v_xor_b32 v6, 4, v6
    v_lshl_add_u32 v{VXO}, v6, 4, v5
    v_add_u32 v{VXO}, {8 * 896 - 1024}, v{VXO}
    s_lshl_b32 s3, s49, 4
    v_lshrrev_b32 v4, 2, v1
    v_add_u32 v4, s3, v4
    v_mul_u32_u24 v4, 2688, v4
    v_and_b32 v5, 3, v1
    v_lshl_add_u32 v4, v5, 4, v4
    s_mul_i32 s65, s59, 56
    v_add_u32 v{VC}, s65, v4
    s_lshl_b32 s62, s49, 12
    s_lshl_b32 s63, s49, 10
    s_add_u32 s63, s63, {FB}
    s_lshr_b32 s68, s48, 3
    s_lshl_b32 s68, s68, 1
    s_and_b32 s3, s48, 7
    s_add_u32 s68, s68, s3
    s_sub_u32 s3, s68, 7
    s_cmp_ge_u32 s68, 7
    s_cselect_b32 s68, s3, s68
    s_waitcnt lgkmcnt(0)
    """)
    if OPT.get("norot"):
        a("s_mov_b32 s68, 0")
    a("s_lshl_b32 s37, s68, 1")
    srd(a, 32, 4, X_BYTES)
    srd(a, 44, 6, WQKV_BYTES)

    def dma1(c):
        tag = f"c{c}"
        a(f"s_mul_i32 s36, s68, {64 * 2688}")
        for j in range(3):
            a(f"s_add_u32 m0, s63, {(c % 3) * BLK + j * 4096}")
            a(f"s_add_u32 s3, s36, {j * 56}")
            a.vmem(f"buffer_load_dwordx4 v{VC}, s[44:47], s3 offen lds", tag)
        a(f"s_add_u32 m0, s62, {c * BLK}")
        a("s_lshl_b32 s3, s68, 7")
        for i in range(4):
            if i == 2:
                a("s_add_u32 s3, s3, 12288")
            a.vmem(f"buffer_load_dwordx4 v{VXO if i % 2 else VXE}, s[32:35], s3 offen offset:{i * 1024} lds", tag)
        a("s_add_u32 s68, s68, 1")
        a("s_cmp_eq_u32 s68, 7")
        a("s_cselect_b32 s68, 0, s68")

    stamp(a, 12)
    dma1(0)
    stamp(a, 13)
    dma1(1)
    a(f"""
    v_mul_u32_u24 v4, 3584, v2
    v_lshrrev_b32 v5, 1, v3
    v_and_b32 v6, 2, v2
    v_xor_b32 v5, v5, v6
    s_lshr_b32 s3, s49, 1
    v_xor_b32 v5, s3, v5
    v_lshl_add_u32 v4, v5, 5, v4
    v_and_b32 v7, 1, v3
    v_lshl_add_u32 v4, v7, 4, v4
    s_lshl_b32 s64, s57, 1
    s_and_b32 s65, s49, 1
    s_add_u32 s64, s64, s65
    s_lshl_b32 s64, s64, 7
    v_add_u32 v{VF}, s64, v4
    s_cmp_ge_u32 s49, 2
    s_cselect_b64 s[12:13], s[14:15], s[12:13]
    s_cmp_eq_u32 s58, 1
    s_cselect_b32 s66, 0, {WG_BYTES}
    """)
    srd(a, 40, 12, "s66")
    srd(a, 28, 24, WS_SIZE)

    def dma2(j):
        a(f"s_add_u32 m0, s62, {W_BLK[j] * BLK}")
        a(f"s_mul_i32 s3, s37, {32 * 3584}")
        for i in range(4):
            if i:
                a(f"s_add_u32 s3, s3, {8 * 3584 - 1024}")
            a.vmem(f"buffer_load_dwordx4 v{VF}, s[40:43], s3 offen offset:{i * 1024} lds", f"f{j}")
        a("s_add_u32 s37, s37, 1")
        a("s_cmp_eq_u32 s37, 14")
        a("s_cselect_b32 s37, 0, s37")

    def issue2(b):
        for j in range(14):
            if W_ISSUE[j] == b:
                dma2(j)

    for c in range(7):
        a.vwait(f"c{c}")
        a("s_barrier")
        if c + 2 <= 6:
            dma1(c + 2)
        issue2(c - 7)
    a(f"""
    s_lshr_b32 s60, s48, 4
    s_lshl_b32 s3, s27, 1
    s_add_u32 s60, s60, s3
    s_lshl_b32 s38, s60, 18
    s_add_u32 s38, s38, {WS_KV}
    s_lshl_b32 s39, s49, 13
    v_add_u32 v8, s39, v9
    v_mov_b32 v2, {L_NONCE}
    s_and_b32 s59, s48, 15
    s_lshl_b32 s59, s59, 2
    s_add_u32 s59, s59, s49
    s_lshl_b32 s61, s60, 2
    s_add_u32 s61, s61, s49
    s_mul_i32 s61, s61, {FS}
    s_add_u32 s61, s61, {WS_FKV}
    v_lshlrev_b32 v3, 3, v1
    v_add_u32 v3, s61, v3
    s_mul_i32 s61, s60, {FS}
    s_lshr_b32 s58, s59, 1
    s_lshl_b32 s3, s59, 3
    s_add_u32 s61, s61, s3
    s_add_u32 s61, s61, {WS_FQ}
    v_mov_b32 v4, s61
    v_cmp_gt_u32 vcc, 32, v1
    s_mul_i32 s58, s58, {FS}
    s_lshl_b32 s54, s60, 6
    v_cndmask_b32 v15, v4, v3, vcc
    s_add_u32 s54, s54, s59
    s_lshl_b32 s54, s54, 11
    s_add_u32 s54, s54, {WS_Q}
    s_lshl_b32 s55, s49, 14
    s_add_u32 s55, s55, {RING + 14336}
    s_mov_b32 s67, 0
    """)
    VKV = 8

    def kv(i):
        st = (i % 3) * 32768
        for half in range(2):
            a(f"s_add_u32 m0, s39, {st + half * 4096}")
            a(f"s_add_u32 s3, s38, {i * 32768 + half * 4096}")
            for j in range(4):
                a.vmem(f"buffer_load_dwordx4 v{VKV}, {WS}, s3 offen offset:{j * 1024} sc1 lds", f"kv{i}")

    def load_q():
        a("s_mov_b32 m0, s55")
        a("s_nop 0")
        a.vmem(f"buffer_load_dwordx4 v9, {WS}, s54 offen sc1 lds", "q")
        a.vmem(f"buffer_load_dwordx4 v9, {WS}, s54 offen offset:1024 sc1 lds", "q")

    def read_nonce():
        a(f"ds_read_b64 {vr(NONCE_V, 2)}, v2")
        a("s_waitcnt lgkmcnt(0)")
        a(f"v_readfirstlane_b32 s50, v{NONCE_V}")
        a(f"v_readfirstlane_b32 s51, v{NONCE_V + 1}")

    for n, b in enumerate(P2_BARS):
        if b < 14:
            a.vwait(*[f"f{j}" for j in range(b, P2_BARS[n + 1])])
        if 1 <= b <= 12:
            stamp(a, 1 + b, grp=1)
        a("s_barrier")
        issue2(b)
        if b == 3:
            read_nonce()
        if b == 10:
            poll(a, 15, 52, 16)
            stamp(a, 3)
            kv(0)
    stamp(a, 2)
    load_q()
    kv(1)
    a("s_cmp_ge_u32 s48, 28")
    a("s_cbranch_scc1 L_LOADER")
    vm_at_split = list(a.vm)

    VW, VTR, VOWN, VRD, VTO, VO = 10, 11, 13, 14, 160, 162
    ACC, H, WF, VG = 16, 80, 144, 166
    a(f"""
    s_mul_i32 s56, s48, 37
    s_lshr_b32 s56, s56, 8
    s_mul_i32 s57, s56, 7
    s_sub_u32 s57, s48, s57
    s_lshl_b32 s3, s27, 2
    s_add_u32 s56, s56, s3
    s_lshl_b32 s46, s49, 14
    s_add_u32 s46, s46, {RING}
    s_mul_i32 s47, s56, {2 * 112}
    s_mul_i32 s3, s49, 28
    s_add_u32 s47, s47, s3
    s_lshl_b32 s47, s47, 10
    s_add_u32 s47, s47, {WS_H}
    s_mul_i32 s44, s49, {448 * 896}
    s_mul_i32 s45, s49, {112 * 896}
    s_add_u32 s62, s49, 4
    s_sub_u32 s3, s49, 2
    s_cmp_lt_u32 s49, 2
    s_cselect_b32 s62, s62, s3
    s_lshl_b32 s62, s62, 14
    """)
    a(f"""
    v_lshrrev_b32 v3, 3, v1
    v_bfe_u32 v4, v1, 1, 2
    v_and_b32 v5, 2, v3
    v_xor_b32 v4, v4, v5
    v_and_b32 v5, 1, v1
    v_mul_u32_u24 v6, 896, v3
    v_lshl_add_u32 v6, v4, 5, v6
    v_lshl_add_u32 v6, v5, 4, v6
    s_lshl_b32 s3, s57, 7
    v_add_u32 v{VW}, s3, v6
    v_lshrrev_b32 v3, 5, v1
    v_bfe_u32 v4, v1, 4, 1
    v_bfe_u32 v5, v1, 2, 2
    v_and_b32 v6, 3, v1
    v_lshl_add_u32 v7, v3, 2, v5
    v_lshlrev_b32 v7, 7, v7
    v_lshl_add_u32 v7, v6, 3, v7
    v_and_b32 v5, 2, v5
    v_xor_b32 v5, v5, v4
    v_lshl_add_u32 v6, v5, 5, v7
    v_add_u32 v{VTR}, s46, v6
    v_add_u32 v{VTO}, s62, v6
    v_xor_b32 v5, 2, v5
    v_lshl_add_u32 v6, v5, 5, v7
    v_add_u32 v{VTR + 1}, s46, v6
    v_add_u32 v{VTO + 1}, s62, v6
    v_add_u32 v{VOWN}, s46, v9
    s_lshl_b32 s3, s49, 12
    s_add_u32 s3, s3, {RING}
    v_add_u32 v{VRD}, s3, v9
    """)
    srd(a, 32, 16, WD_BYTES)

    def load_w(k):
        a(f"s_add_u32 m0, s46, {(k % 8) * 2048}")
        a(f"s_add_u32 s3, s44, {k * 16 * 896}")
        a.vmem(f"buffer_load_dwordx4 v{VW}, s[32:35], s3 offen lds", f"w{k}")
        a(f"s_add_u32 s3, s44, {k * 16 * 896 + 6144}")
        a.vmem(f"buffer_load_dwordx4 v{VW}, s[32:35], s3 offen offset:1024 lds", f"w{k}")

    def load_h(k, r):
        a(f"s_add_u32 s3, s47, {k * 1024 + r * 112 * 1024}")
        a.vmem(f"buffer_load_dwordx4 {vr(H + ((k % 8) * 2 + r) * 4, 4)}, v9, {WS}, s3 offen sc1", f"h{k}")

    a(f"""
    s_mul_i32 s3, s56, {FS}
    v_mov_b32 v3, s58
    v_mov_b32 v4, s3
    v_cmp_gt_u32 vcc, 4, v1
    v_and_b32 v5, 1, v1
    s_mov_b32 s61, {WS_FG}
    v_cndmask_b32 v3, v4, v3, vcc
    v_lshl_add_u32 v3, v5, 3, v3
    v_add_u32 v163, s61, v3
    """)
    a(f"""
    v_and_b32 v15, 15, v1
    v_min_u32 v15, 13, v15
    v_lshlrev_b32 v15, 3, v15
    s_lshl_b32 s61, s56, 2
    s_add_u32 s61, s61, s49
    s_mul_i32 s61, s61, {FS}
    s_add_u32 s61, s61, {WS_FH}
    v_add_u32 v15, s61, v15
    v_cmp_gt_u32 vcc, 16, v1
    s_nop 1
    v_cndmask_b32 v15, v15, v163, vcc
    """)
    kv(2)
    a.vwait("q")
    a(f"s_setprio {OPT.get('gprio', 0)}")
    a("s_barrier")
    stamp(a, 4)
    for k in range(7):
        load_w(k)

    def trd(k):
        b = WF + (k % 2) * 8
        o = (k % 8) * 2048
        for ct in range(2):
            a(f"ds_read_b64_tr_b16 {vr(b + ct * 4, 2)}, v{VTR + ct} offset:{o}")
            a(f"ds_read_b64_tr_b16 {vr(b + ct * 4 + 2, 2)}, v{VTR + ct} offset:{o + 1024}")

    def step(k):
        a.vwait(f"h{k}", f"w{k + 1}")
        a("s_waitcnt lgkmcnt(0)")
        if k + 1 < 28:
            trd(k + 1)
        n = 0
        for r in range(2):
            for ct in range(2):
                d = ACC + (r * 2 + ct) * 16
                mfma(a, d, WF + (k % 2) * 8 + ct * 4, H + ((k % 8) * 2 + r) * 4, None if k == 0 else d)
                if k + 8 < 28:
                    if n == 0:
                        load_w(k + 8)
                    if n == 1:
                        load_h(k + 8, 0)
                    if n == 3:
                        load_h(k + 8, 1)
                n += 1

    spi = OPT.get("spi", 4)
    hs = OPT.get("hs", 3)
    plan = [0] * (hs + 1) + [spi] * (7 - hs) + [OPT.get("spl", 4)]
    k = 0
    for i in range(9):
        if i >= 1 and i + 2 <= 7:
            kv(i + 2)
        if i == 1:
            load_w(7)
        if i == hs:
            poll(a, 15, 52, WF)
            stamp(a, 5)
            for kk in range(8):
                load_h(kk, 0)
                load_h(kk, 1)
            trd(0)
        if i == 7:
            srd(a, 40, 8, WO_BYTES)
            for g4 in range(4):
                a(f"s_add_u32 m0, s62, {g4 * 4096}")
                for j in range(4):
                    if g4 == 3 and j == 3:
                        continue
                    a(f"s_add_u32 s3, s45, {g4 * 32 * 896 + j * 6144}")
                    a.vmem(f"buffer_load_dwordx4 v{VW}, s[40:43], s3 offen offset:{j * 1024} lds", "wo")
        for _ in range(plan[i]):
            if k < 28:
                step(k)
                k += 1
        a.vwait(f"kv{i + 1}")
        a("s_barrier")
        if i in (3, 7, 8):
            stamp(a, {3: 6, 7: 7, 8: 8}[i])
    a("s_setprio 3")
    while k < 28:
        step(k)
        k += 1
    stamp(a, 9)
    a(f"""
    v_and_b32 v15, 7, v1
    v_lshlrev_b32 v15, 3, v15
    s_lshl_b32 s61, s56, 2
    s_add_u32 s61, s61, s49
    s_mul_i32 s61, s61, {FS}
    s_add_u32 s61, s61, {WS_FO}
    """)
    poll(a, 15, 61, WF)
    stamp(a, 10)
    a(f"""
    s_lshl_b32 s47, s56, 6
    s_lshl_b32 s3, s49, 3
    s_add_u32 s47, s47, s3
    s_lshl_b32 s47, s47, 10
    s_add_u32 s47, s47, {WS_O}
    v_and_b32 v2, 31, v1
    v_lshlrev_b32 v3, 2, v2
    s_lshl_b32 s3, s56, 8
    s_add_u32 s3, s3, {WS_G}
    """)
    a.vmem(f"buffer_load_dword v{VG}, v3, {WS}, s3 offen sc1", "g")
    a.vmem(f"buffer_load_dword v{VG + 1}, v3, {WS}, s3 offen offset:128 sc1", "g")
    for k in range(8):
        for r in range(2):
            if k % 4 == 0:
                a(f"s_add_u32 s{64 + r}, s47, {r * 32768 + k * 1024}")
            a.vmem(f"buffer_load_dwordx4 {vr(H + (k * 2 + r) * 4, 4)}, v9, {WS}, s{64 + r} offen offset:{(k % 4) * 1024} sc1", f"o{k}")

    def tro(k):
        b = WF + (k % 2) * 8
        row = 28 * (k // 2) + 16 * (k % 2)
        for ct in range(2):
            a(f"ds_read_b64_tr_b16 {vr(b + ct * 4, 2)}, v{VTO + ct} offset:{row * 128}")
            a(f"ds_read_b64_tr_b16 {vr(b + ct * 4 + 2, 2)}, v{VTO + ct} offset:{row * 128 + 1024}")

    tro(0)
    srd(a, 32, 20, X_BYTES)
    a(f"""
    s_lshr_b32 s66, s49, 1
    s_and_b32 s67, s49, 1
    s_lshl_b32 s3, s56, 1
    s_add_u32 s3, s3, s66
    s_lshl_b32 s3, s3, 5
    v_add_u32 v2, s3, v2
    v_mul_u32_u24 v{VO}, 896, v2
    v_lshrrev_b32 v3, 5, v1
    v_lshl_add_u32 v{VO}, v3, 4, v{VO}
    s_lshl_b32 s63, s57, 7
    s_lshl_b32 s3, s67, 6
    s_add_u32 s63, s63, s3
    """)
    a.vwait("g")
    a(f"""
    v_sub_f32 v2, 1.0, v{VG}
    v_sub_f32 v4, 1.0, v{VG + 1}
    v_mov_b32 v3, v2
    v_mov_b32 v5, v4
    """)
    for p in range(32):
        a(f"v_pk_mul_f32 {vr(ACC + 2 * p, 2)}, {vr(ACC + 2 * p, 2)}, {'v[2:3]' if p < 16 else 'v[4:5]'}")
    for k in range(8):
        a.vwait(f"o{k}")
        a("s_waitcnt lgkmcnt(0)")
        if k < 7:
            tro(k + 1)
        for r in range(2):
            for ct in range(2):
                d = ACC + (r * 2 + ct) * 16
                mfma(a, d, WF + (k % 2) * 8 + ct * 4, H + (k * 2 + r) * 4, d)
    a("s_nop 15")
    stamp(a, 11)
    for t in range(4):
        for q in range(4):
            a(f"ds_write_b128 v{VOWN}, {vr(ACC + t * 16 + q * 4, 4)} offset:{t * 4096 + q * 1024}")
    a("s_waitcnt lgkmcnt(0)")
    a("s_barrier")
    for w in range(4):
        for q in range(4):
            a(f"ds_read_b128 {vr(ACC + w * 16 + q * 4, 4)}, v{VRD} offset:{w * 16384 + q * 1024}")
        if w == 2:
            a("s_waitcnt lgkmcnt(4)")
            for p in range(8):
                a(f"v_pk_add_f32 {vr(H + 2 * p, 2)}, {vr(ACC + 2 * p, 2)}, {vr(ACC + 16 + 2 * p, 2)}")
    a("s_waitcnt lgkmcnt(0)")
    for p in range(8):
        a(f"v_pk_add_f32 {vr(ACC + 32 + 2 * p, 2)}, {vr(ACC + 32 + 2 * p, 2)}, {vr(ACC + 48 + 2 * p, 2)}")
    for p in range(8):
        a(f"v_pk_add_f32 {vr(H + 2 * p, 2)}, {vr(H + 2 * p, 2)}, {vr(ACC + 32 + 2 * p, 2)}")
    for p in range(8):
        a(f"v_cvt_pk_bf16_f32 v{ACC + p}, v{H + 2 * p}, v{H + 2 * p + 1}")
    a("s_nop 1")
    for pr in range(2):
        a(f"v_permlane32_swap_b32 v{ACC + 4 * pr}, v{ACC + 4 * pr + 2}")
        a(f"v_permlane32_swap_b32 v{ACC + 4 * pr + 1}, v{ACC + 4 * pr + 3}")
    for pr in range(2):
        a(f"buffer_store_dwordx4 {vr(ACC + 4 * pr, 4)}, v{VO}, s[32:35], s63 offen offset:{32 * pr}")
    stamp_flush(a)
    a("s_endpgm")

    a.label("L_LOADER")
    a.vm = list(vm_at_split)
    a(f"""
    v_and_b32 v3, 1, v1
    v_lshlrev_b32 v3, 3, v3
    s_add_u32 s61, s58, {WS_FG}
    """)
    kv(2)
    a.vwait("q")
    a("s_barrier")
    for i in range(7):
        if i >= 1 and i + 2 <= 7:
            kv(i + 2)
        if i == 2:
            poll(a, 3, 61, 16)
        a.vwait(f"kv{i + 1}")
        a("s_barrier")
    stamp_flush(a)
    a.label("L_END")
    a("s_endpgm")


def main():
    global DIAG
    DIAG = os.environ.get("DIAG", "0") == "1"
    for kvp in os.environ.get("OPT", "").split(","):
        if kvp:
            k, _, v = kvp.partition("=")
            OPT[k] = int(v) if v else 1
    ref = open(f"cdna_kernels/{NAME}.s.ref").read().split("\n")
    head = [l for l in ref if l.startswith(";") and "@launch" not in l]
    a = Asm()
    for l in head:
        a.raw(l)
    a.raw("; @launch grid=(256,1,1) block=(768,1,1) lds=163840")
    a.raw('.amdgcn_target "amdgcn-amd-amdhsa--gfx950"')
    a.raw(".text")
    kn = NAME + "_kernel"
    a.raw(f".globl {kn}")
    a.raw(".p2align 8")
    a.raw(f".type {kn},@function")
    a.label(kn)
    gen_prologue(a)
    gen_p1_compute(a)
    gen_attention(a)
    gen_aux(a)
    a.raw('.section .rodata,"a"')
    out = a.text() + f""".p2align 6
.amdhsa_kernel {kn}
  .amdhsa_next_free_vgpr 168
  .amdhsa_next_free_sgpr 102
  .amdhsa_accum_offset 168
  .amdhsa_group_segment_fixed_size 0
  .amdhsa_kernarg_size 88
  .amdhsa_user_sgpr_count 2
  .amdhsa_user_sgpr_kernarg_segment_ptr 1
  .amdhsa_system_sgpr_workgroup_id_x 1
.end_amdhsa_kernel
"""
    path = sys.argv[1] if len(sys.argv) > 1 else f"cdna_kernels/{NAME}.s"
    open(path, "w").write(out)


if __name__ == "__main__":
    main()
```

```python
import math
import os
import struct
import sys

NAME = "gated_mix__mha_block__geglu_ffn__prompt"

WS_Q = 0
WS_KV = 2 << 20
WS_H = 6 << 20
WS_O = 14 << 20
WS_G = 20 << 20
WS_F = 21 << 20
FS = 4352
WS_FKV = WS_F
WS_FQ = WS_F + 64 * FS
WS_FG = WS_F + 80 * FS
WS_FH = WS_F + 112 * FS
WS_FO = WS_F + 240 * FS
WS_D = 23 << 20
WS_SIZE = 24 << 20

X_BYTES = 2048 * 448 * 2
WQKV_BYTES = 448 * 1344 * 2
WG_BYTES = 448 * 1792 * 2
WD_BYTES = 1792 * 448 * 2
WO_BYTES = 448 * 448 * 2
GW_BYTES = 448 * 2

BLK = 16384
FB = 7 * BLK
L_NONCE = 0
W_BLK = [8, 9, 7, 8, 9, 0, 7, 8, 1, 9, 2, 7, 8, 3]
W_ISSUE = [-2, -1, 0, 1, 2, 2, 3, 4, 4, 5, 6, 7, 8, 8]
P2_BARS = [0, 1, 2, 3, 4, 5, 6, 7, 8, 10, 12, 14]
RING = 98304

DIAG = False
OPT = {}

WS = "s[28:31]"
NONCE_V = 164
HP = 144


def f2u(x):
    return struct.unpack("<I", struct.pack("<f", x))[0]


class Asm:
    def __init__(self):
        self.L = []
        self.vm = []
        self.nlab = 0

    def __call__(self, s):
        for line in s.strip("\n").split("\n"):
            if line.strip():
                self.L.append("    " + line.strip())

    def label(self, s):
        self.L.append(s + ":")

    def raw(self, s):
        self.L.append(s)

    def text(self):
        return "\n".join(self.L) + "\n"

    def newlabel(self, p):
        self.nlab += 1
        return f"{p}_{self.nlab}"

    def vmem(self, s, tag):
        self(s)
        self.vm.append(tag)

    def vwait(self, *tags):
        last = -1
        for i, t in enumerate(self.vm):
            if t in tags:
                last = i
        if last < 0:
            return
        n = len(self.vm) - 1 - last
        assert n <= 63
        self(f"s_waitcnt vmcnt({n})")
        self.vm = self.vm[last + 1:]

    def vreset(self):
        self.vm = []


def vr(b, n):
    return f"v[{b}:{b + n - 1}]"


def stamp(a, i, real=False, grp=0):
    if DIAG and (grp == OPT.get("grp", 0) or i in (0, 1, 14, 15)):
        a(f"{'s_memrealtime' if real else 's_memtime'} s[{70 + 2 * i}:{71 + 2 * i}]")


def stamp2(a, i):
    stamp(a, i, grp=5)
    stamp(a, i + 1, True, grp=5)


def stamp_flush(a):
    if not DIAG:
        return
    stamp(a, 14)
    stamp(a, 15, True)
    a("s_waitcnt lgkmcnt(0)")
    a("s_mov_b64 exec, 1")
    for i in range(16):
        a(f"v_mov_b32 v{16 + i}, s{70 + 2 * i}")
    a("s_lshl_b32 s68, s2, 4")
    a("s_add_u32 s68, s68, s26")
    a("s_lshl_b32 s68, s68, 6")
    a(f"s_add_u32 s68, s68, {WS_D}")
    for q in range(4):
        a(f"buffer_store_dwordx4 {vr(16 + 4 * q, 4)}, off, {WS}, s68 offset:{16 * q}")


def srd(a, d, lo, nbytes):
    a(f"s_mov_b32 s{d}, s{lo}")
    a(f"s_and_b32 s{d + 1}, s{lo + 1}, 0xffff")
    a(f"s_mov_b32 s{d + 2}, {nbytes}")
    a(f"s_mov_b32 s{d + 3}, 0x20000")


def mfma(a, d, x, y, c):
    cs = "0" if c is None else vr(c, 16)
    a(f"v_mfma_f32_32x32x16_bf16 {vr(d, 16)}, {vr(x, 4)}, {vr(y, 4)}, {cs}")


def flag_store(a, sregs):
    a("s_mov_b64 exec, 1")
    for s in sregs:
        a.vmem(f"buffer_store_dwordx2 {vr(NONCE_V, 2)}, off, {WS}, s{s} sc1", "flag")
    a("s_mov_b64 exec, -1")


def nonce_check(a, vzero):
    lp, dn = a.newlabel("NLOOP"), a.newlabel("NDONE")
    a("s_mov_b32 s69, 0x40000")
    a.label(lp)
    a(f"""
    v_cmp_ne_u32 vcc, 0, v{NONCE_V}
    s_sub_u32 s69, s69, 1
    s_cbranch_scc1 {dn}
    s_cbranch_vccnz {dn}
    global_load_dwordx2 {vr(NONCE_V, 2)}, v{vzero}, s[22:23] sc1
    s_waitcnt vmcnt(0)
    s_branch {lp}
    """)
    a.label(dn)


def poll(a, vaddr, soff, vtmp):
    lp, dn = a.newlabel("POLL"), a.newlabel("POLLD")
    a("s_mov_b32 s69, 0x40000")
    a.label(lp)
    a(f"buffer_load_dwordx2 {vr(vtmp, 2)}, v{vaddr}, {WS}, s{soff} offen sc1")
    a("s_waitcnt vmcnt(0)")
    a(f"v_cmp_eq_u64 vcc, s[50:51], {vr(vtmp, 2)}")
    a("s_sub_u32 s69, s69, 1")
    a(f"s_cbranch_scc1 {dn}")
    a("s_cmp_eq_u64 vcc, -1")
    a(f"s_cbranch_scc1 {dn}")
    a(f"s_sleep {OPT.get('sleep', 4)}")
    a(f"s_branch {lp}")
    a.label(dn)
    a.vreset()


def gen_prologue(a):
    a("""
    s_cmp_ge_u32 s2, 256
    s_cbranch_scc1 L_END
    """)
    stamp(a, 0)
    stamp(a, 1, True)
    a("""
    s_load_dwordx16 s[4:19], s[0:1], 0
    s_load_dwordx4 s[20:23], s[0:1], 64
    s_load_dwordx2 s[24:25], s[0:1], 80
    v_lshrrev_b32 v2, 6, v0
    v_and_b32 v1, 63, v0
    s_and_b32 s27, s2, 7
    v_readfirstlane_b32 s26, v2
    s_lshr_b32 s48, s2, 3
    s_and_b32 s56, s48, 7
    s_lshr_b32 s3, s27, 2
    s_lshl_b32 s3, s3, 3
    s_add_u32 s56, s56, s3
    s_lshr_b32 s57, s48, 3
    s_and_b32 s3, s27, 3
    s_lshl_b32 s3, s3, 2
    s_add_u32 s57, s57, s3
    s_cmp_ge_u32 s57, 14
    s_cselect_b32 s58, 1, 0
    s_mul_i32 s59, s57, 3
    v_lshlrev_b32 v9, 4, v1
    s_mov_b32 s52, 0
    s_mov_b32 s53, -1
    s_cmp_ge_u32 s26, 8
    s_cbranch_scc1 L_AUX
    """)


def gen_p1_compute(a):
    VXR, VT1, VT2 = 10, 18, 19
    XF, WF, AC1, AC2 = 24, 40, 56, 80
    NV = 150
    a(f"""
    s_and_b32 s49, s26, 3
    s_lshr_b32 s62, s26, 2
    s_lshl_b32 s61, s49, 12
    v_and_b32 v2, 31, v1
    v_lshrrev_b32 v3, 5, v1
    v_bfe_u32 v4, v1, 1, 3
    v_lshlrev_b32 v5, 7, v2
    v_add_u32 v5, s61, v5
    v_cmp_eq_u32 s[54:55], 28, v2
    """)
    for s in range(4):
        a(f"v_add_u32 v6, {2 * s}, v3")
        a("v_xor_b32 v6, v6, v4")
        a(f"v_lshl_add_u32 v{VXR + s}, v6, 4, v5")
        a(f"v_add_u32 v{VXR + 4 + s}, 65536, v{VXR + s}")
    a(f"""
    v_bfe_u32 v4, v1, 4, 1
    v_bfe_u32 v5, v1, 2, 2
    v_and_b32 v6, 3, v1
    v_lshlrev_b32 v6, 3, v6
    v_lshl_add_u32 v8, v3, 9, v6
    v_lshl_add_u32 v8, v5, 6, v8
    v_lshl_add_u32 v8, v4, 5, v8
    s_lshl_b32 s61, s62, 13
    s_add_u32 s61, s61, {FB}
    v_add_u32 v{VT1}, s61, v8
    v_lshl_add_u32 v7, v3, 10, v6
    v_lshl_add_u32 v7, v5, 7, v7
    v_lshl_add_u32 v7, v4, 13, v7
    s_lshl_b32 s61, s62, 12
    v_add_u32 v7, s61, v7
    v_and_b32 v5, 2, v5
    v_xor_b32 v5, v5, v4
    s_and_b32 s63, s26, 2
    v_xor_b32 v5, s63, v5
    v_lshl_add_u32 v{VT2}, v5, 5, v7
    v_xor_b32 v5, 1, v5
    v_lshl_add_u32 v{VT2 + 1}, v5, 5, v7
    v_add_u32 v{VT2 + 2}, {FB}, v{VT2}
    v_add_u32 v{VT2 + 3}, {FB}, v{VT2 + 1}
    s_waitcnt lgkmcnt(0)
    """)
    srd(a, 28, 24, WS_SIZE)
    sk = a.newlabel("NSKIP")
    a(f"""
    v_mov_b32 v{NV + 2}, 0
    s_lshl_b32 s3, s2, 4
    s_add_u32 s3, s3, s26
    s_cmp_lg_u32 s3, 7
    s_cbranch_scc1 {sk}
    s_memrealtime s[50:51]
    s_waitcnt lgkmcnt(0)
    s_or_b32 s50, s50, 1
    v_mov_b32 v{NV + 4}, s50
    v_mov_b32 v{NV + 5}, s51
    s_mov_b64 exec, 1
    global_store_dwordx2 v{NV + 2}, {vr(NV + 4, 2)}, s[22:23] sc0 sc1
    s_mov_b64 exec, -1
    """)
    a.label(sk)
    qscale = math.log2(math.e) / math.sqrt(28.0)
    a("""
    s_lshl_b32 s60, s62, 1
    s_add_u32 s60, s60, s59
    s_lshl_b32 s64, s56, 2
    s_add_u32 s64, s64, s49
    s_and_b32 s43, s26, 1
    s_lshl_b32 s43, s43, 13
    s_lshl_b32 s61, s49, 12
    s_sub_u32 s43, s43, s61
    """)
    def ft_addr(dst, j):
        a(f"s_add_u32 s66, s60, {j}")
        a(f"s_mul_i32 s44, s66, {FS}")
        a("s_lshl_b32 s3, s64, 3")
        a("s_add_u32 s44, s44, s3")
        a(f"s_add_u32 s44, s44, {WS_FQ}")
        a("s_and_b32 s45, s66, 15")
        a("s_lshl_b32 s45, s45, 2")
        a("s_bfe_u32 s3, s64, 0x20001")
        a("s_add_u32 s45, s45, s3")
        a(f"s_mul_i32 s45, s45, {FS}")
        a("s_lshr_b32 s3, s66, 5")
        a("s_lshl_b32 s3, s3, 3")
        a("s_lshr_b32 s61, s64, 3")
        a("s_add_u32 s3, s3, s61")
        a("s_lshl_b32 s3, s3, 1")
        a("s_and_b32 s61, s64, 1")
        a("s_add_u32 s3, s3, s61")
        a("s_lshl_b32 s3, s3, 3")
        a("s_add_u32 s45, s45, s3")
        a(f"s_add_u32 s45, s45, {WS_FKV}")
        a("s_cmp_lt_u32 s66, 16")
        a(f"s_cselect_b32 s{dst}, s44, s45")

    for j in range(2):
        ft_addr(40 + j, j)
        a("s_and_b32 s61, s66, 15")
        a("s_lshl_b32 s61, s61, 6")
        a("s_add_u32 s61, s61, s64")
        a("s_cmp_lt_u32 s66, 16")
        a(f"s_cselect_b32 s{32 + 2 * j}, {f2u(qscale):#x}, 1.0")
        a(f"s_mov_b32 s{33 + 2 * j}, s{32 + 2 * j}")
        a(f"s_cselect_b32 s{36 + j}, 0, 0x3f80")
        a("s_cselect_b32 s3, 11, 12")
        a(f"s_cselect_b32 s44, {WS_Q}, {WS_KV}")
        a("s_lshl_b32 s61, s61, s3")
        a(f"s_add_u32 s{38 + j}, s61, s44")
    a("""
    s_cmp_ge_u32 s26, 4
    s_cselect_b32 s41, s40, s41
    s_cbranch_scc1 P1_Y
    s_cmp_ge_u32 s60, 32
    s_cbranch_scc1 P1_XV
    """)

    def xaddr(c, s):
        return (VXR + s, c * BLK) if c < 4 else (VXR + 4 + s, c * BLK - 65536)

    def reads2(k):
        c, s = divmod(k, 4)
        b = k % 2
        reg, off = xaddr(c, s)
        for r in range(2):
            a(f"ds_read_b128 {vr(XF + b * 8 + r * 4, 4)}, v{reg} offset:{off + r * 4096}")
        blk = W_BLK[k // 2]
        base, o = (VT2, blk * BLK) if blk < 4 else (VT2 + 2, blk * BLK - FB)
        o += (k % 2) * 2048
        for j in range(2):
            d = WF + b * 8 + j * 4
            a(f"ds_read_b64_tr_b16 {vr(d, 2)}, v{base + j} offset:{o}")
            a(f"ds_read_b64_tr_b16 {vr(d + 2, 2)}, v{base + j} offset:{o + 512}")

    def reads1(k, ns):
        c, s = divmod(k, 4)
        b = k % 2
        reg, off = xaddr(c, s)
        a(f"ds_read_b128 {vr(XF + b * 8, 4)}, v{reg} offset:{off}")
        for j in range(ns):
            d = WF + b * 8 + j * 4
            o = (c % 3) * BLK + j * 4096 + s * 1024
            a(f"ds_read_b64_tr_b16 {vr(d, 2)}, v{VT1} offset:{o}")
            a(f"ds_read_b64_tr_b16 {vr(d + 2, 2)}, v{VT1} offset:{o + 256}")

    def pass1(ns, swap):
        stamp(a, 2)
        a("s_barrier")
        stamp(a, 3)
        stamp(a, 3, grp=3)
        stamp2(a, 2)
        reads1(0, ns)
        for k in range(28):
            a("s_waitcnt lgkmcnt(0)")
            if (k + 1) % 4 == 0 and k + 1 < 28:
                a("s_barrier")
                stamp(a, 3 + (k + 1) // 4, grp=3)
            if k + 1 < 28:
                reads1(k + 1, ns)
            b = k % 2
            for j in range(ns):
                d = AC1 + j * 16
                w, x = WF + b * 8 + j * 4, XF + b * 8
                if swap:
                    mfma(a, d, x, w, None if k == 0 else d)
                else:
                    mfma(a, d, w, x, None if k == 0 else d)

    T = HP

    def epi_qk(d, j):
        sc = 32 + 2 * j
        for p in range(8):
            a(f"v_pk_mul_f32 {vr(d + 2 * p, 2)}, {vr(d + 2 * p, 2)}, s[{sc}:{sc + 1}]")
        a(f"v_mov_b32 v{T}, s{36 + j}")
        for p in range(8):
            a(f"v_cvt_pk_bf16_f32 v{d + p}, v{d + 2 * p}, v{d + 2 * p + 1}")
        a(f"v_cndmask_b32 v{d + 6}, v{d + 6}, v{T}, s[52:53]")
        a(f"v_cndmask_b32 v{d + 7}, v{d + 7}, 0, s[52:53]")

    def epi_v(d, j):
        a(f"v_mov_b32 v{T}, 0x3f803f80")
        for p in range(8):
            a(f"v_cvt_pk_bf16_f32 v{d + p}, v{d + 2 * p}, v{d + 2 * p + 1}")
        for p in range(8):
            a(f"v_cndmask_b32 v{d + p}, v{d + p}, v{T}, s[54:55]")
        a(f"s_add_u32 s{38 + j}, s{38 + j}, 2048")

    def mid(ywave):
        a(f"global_load_dwordx2 {vr(NONCE_V, 2)}, v{NV + 2}, s[22:23] sc1")
        a("s_barrier")
        stamp(a, 4)
        stamp(a, 10, grp=3)
        stamp2(a, 4)
        for i in range(8):
            a(f"v_add_u32 v{VXR + i}, s43, v{VXR + i}")
        reads2(0)

    for lab, ns, swap in (("P1_XN", 2, False), ("P1_XV", 2, True), ("P1_YN", 1, False), ("P1_YV", 1, True)):
        if lab == "P1_YN":
            a.label("P1_Y")
            a("s_cmp_ge_u32 s60, 32")
            a("s_cbranch_scc1 P1_YV")
        a.label(lab)
        pass1(ns, swap)
        mid(ns == 1)
        for j in range(ns):
            (epi_v if swap else epi_qk)(AC1 + j * 16, j)
        if lab != "P1_YV":
            a("s_branch P2_START")
    a.label("P2_START")

    a("s_cmp_eq_u32 s58, 1")
    a("s_cbranch_scc1 P2_IDLE")

    def qkv_store(n):
        j, hf = divmod(n, 2)
        if j:
            sk = a.newlabel("YSKIP")
            a("s_cmp_ge_u32 s26, 4")
            a(f"s_cbranch_scc1 {sk}")
        a(f"buffer_store_dwordx4 {vr(AC1 + j * 16 + hf * 4, 4)}, v9, {WS}, s{38 + j} offen offset:{hf * 1024} sc1")
        if j:
            a.label(sk)

    def hooks(j):
        if j == OPT.get("fb", 6):
            a("s_waitcnt vmcnt(0)")
            nonce_check(a, NV + 2)
            flag_store(a, [40, 41])
            a.vreset()

    for k in range(28):
        a("s_waitcnt lgkmcnt(0)")
        bar = (k + 1) % 2 == 0 and (k + 1) // 2 in P2_BARS
        if bar:
            a("s_barrier")
            if (k + 1) // 2 <= 12:
                stamp(a, 1 + (k + 1) // 2, grp=1)
            if k + 1 == 28:
                stamp(a, 5)
        b = k % 2
        n0 = len(a.L)
        if k + 1 < 28:
            reads2(k + 1)
        rd = a.L[n0:]
        del a.L[n0:]
        n = 0
        for j in range(2):
            for r in range(2):
                d = AC2 + (j * 2 + r) * 16
                mfma(a, d, WF + b * 8 + j * 4, XF + b * 8 + r * 4, None if k == 0 else d)
                if n < 2:
                    a.L.extend(rd[3 * n:3 * n + 3])
                n += 1
        qs = OPT.get("qs", 2)
        if k % 2 == 0 and qs <= k < qs + 8:
            qkv_store((k - qs) // 2)
        if bar:
            hooks((k + 1) // 2)
    stamp(a, 6)
    stamp2(a, 6)
    VC3, VC1, VONE = 10, 12, 14
    c1 = -2.0 * math.log2(math.e) * math.sqrt(2.0 / math.pi)
    c3 = c1 * 0.044715
    a(f"""
    s_lshl_b32 s65, s56, 1
    s_and_b32 s3, s26, 1
    s_add_u32 s65, s65, s3
    s_lshl_b32 s63, s57, 2
    s_lshr_b32 s3, s26, 1
    s_add_u32 s63, s63, s3
    s_mul_i32 s40, s65, 112
    s_add_u32 s40, s40, s63
    s_lshl_b32 s40, s40, 11
    s_add_u32 s40, s40, {WS_H}
    s_add_u32 s42, s40, {112 * 1024}
    s_mul_i32 s44, s63, 37
    s_lshr_b32 s44, s44, 9
    s_mul_i32 s45, s44, 14
    s_sub_u32 s45, s63, s45
    s_lshl_b32 s59, s65, 2
    s_add_u32 s59, s59, s44
    s_mul_i32 s59, s59, {FS}
    s_lshl_b32 s45, s45, 3
    s_add_u32 s59, s59, s45
    s_add_u32 s59, s59, {WS_FH}
    v_mov_b32 v{VC3}, {f2u(c3):#x}
    v_mov_b32 v{VC3 + 1}, {f2u(c3):#x}
    v_mov_b32 v{VC1}, {f2u(c1):#x}
    v_mov_b32 v{VC1 + 1}, {f2u(c1):#x}
    v_mov_b32 v{VONE}, 1.0
    v_mov_b32 v{VONE + 1}, 1.0
    """)
    T2 = XF

    def epi_ffn(d, r, j):
        T = T2
        o = HP + (r * 2 + j) * 4
        for p in range(4):
            a(f"v_pk_mul_f32 {vr(T + 2 * p, 2)}, {vr(d + 2 * p, 2)}, {vr(d + 2 * p, 2)}")
        for p in range(4):
            a(f"v_pk_fma_f32 {vr(T + 2 * p, 2)}, {vr(T + 2 * p, 2)}, {vr(VC3, 2)}, {vr(VC1, 2)}")
        for p in range(4):
            a(f"v_pk_mul_f32 {vr(T + 2 * p, 2)}, {vr(T + 2 * p, 2)}, {vr(d + 2 * p, 2)}")
        for p in range(8):
            a(f"v_exp_f32 v{T + p}, v{T + p}")
        for p in range(4):
            a(f"v_pk_mul_f32 {vr(T + 8 + 2 * p, 2)}, {vr(d + 2 * p, 2)}, {vr(d + 8 + 2 * p, 2)}")
        for p in range(4):
            a(f"v_pk_add_f32 {vr(T + 2 * p, 2)}, {vr(T + 2 * p, 2)}, {vr(VONE, 2)}")
        for p in range(8):
            a(f"v_rcp_f32 v{T + p}, v{T + p}")
        a("s_nop 0")
        for p in range(4):
            a(f"v_pk_mul_f32 {vr(T + 2 * p, 2)}, {vr(T + 2 * p, 2)}, {vr(T + 8 + 2 * p, 2)}")
        for p in range(4):
            a(f"v_cvt_pk_bf16_f32 v{o + p}, v{T + 2 * p}, v{T + 2 * p + 1}")
        a(f"buffer_store_dwordx4 {vr(o, 4)}, v9, {WS}, s{40 + 2 * r} offen offset:{j * 1024} sc1")

    for j in range(2):
        for r in range(2):
            epi_ffn(AC2 + (j * 2 + r) * 16, r, j)
    a("s_branch P1_DONE")
    a.label("P2_IDLE")
    for n in range(4):
        qkv_store(n)
    hooks(OPT.get("fb", 6))
    a("s_waitcnt lgkmcnt(0)")
    a("s_cmp_lt_u32 s26, 2")
    a("s_cbranch_scc1 P2_GATE")
    srd(a, 32, 16, WD_BYTES)
    srd(a, 44, 8, WO_BYTES)
    a(f"""
    s_lshl_b32 s3, s56, 1
    s_and_b32 s61, s57, 1
    s_add_u32 s3, s3, s61
    s_mul_i32 s3, s3, 6
    s_add_u32 s3, s3, s26
    s_sub_u32 s3, s3, 2
    v_lshlrev_b32 v3, 7, v1
    s_mul_i32 s61, s3, {66 * 128}
    s_mul_i32 s3, s3, {17 * 128}
    buffer_load_dword v4, v3, s[32:35], s61 offen
    s_mov_b64 exec, 0x1ffff
    buffer_load_dword v5, v3, s[44:47], s3 offen
    s_add_u32 s61, s61, {64 * 128}
    s_mov_b64 exec, 3
    buffer_load_dword v6, v3, s[32:35], s61 offen
    s_mov_b64 exec, -1
    s_branch P2_IDLE2
    """)
    a.label("P2_GATE")
    srd(a, 32, 18, GW_BYTES)
    a(f"""
    v_lshrrev_b32 v3, 5, v1
    v_lshlrev_b32 v3, 4, v3
    s_and_b32 s3, s57, 1
    s_lshl_b32 s61, s3, 13
    s_lshl_b32 s44, s26, 12
    s_sub_u32 s61, s61, s44
    s_lshl_b32 s65, s56, 1
    s_add_u32 s65, s65, s3
    """)
    for i in range(8):
        a(f"v_add_u32 v{VXR + i}, s61, v{VXR + i}")
    GA = 24
    a("""
    s_lshr_b32 s68, s48, 3
    s_mul_i32 s68, s68, ROTC
    s_and_b32 s3, s48, ROTM
    s_add_u32 s68, s68, s3
    s_sub_u32 s3, s68, 7
    s_cmp_ge_u32 s68, 7
    s_cselect_b32 s68, s3, s68
    s_lshl_b32 s68, s68, 7
    """)
    if OPT.get("norot"):
        a("s_mov_b32 s68, 0")
    for half in range(2):
        for kk in range(14):
            k = half * 14 + kk
            if k and k % 4 == 0:
                a("s_add_u32 s68, s68, 128")
                a("s_cmp_eq_u32 s68, 896")
                a("s_cselect_b32 s68, 0, s68")
            a(f"buffer_load_dwordx4 {vr(AC2 + 4 * kk, 4)}, v3, s[32:35], s68 offen offset:{(k % 4) * 32}")
        a("s_waitcnt vmcnt(0)")
        for kk in range(14):
            k = half * 14 + kk
            reg, off = xaddr(k // 4, k % 4)
            a(f"ds_read_b128 {vr(WF + (k % 2) * 4, 4)}, v{reg} offset:{off}")
            a("s_waitcnt lgkmcnt(0)")
            mfma(a, GA, AC2 + 4 * kk, WF + (k % 2) * 4, None if k == 0 else GA)
    a(f"""
    s_lshl_b32 s44, s65, 8
    s_lshl_b32 s3, s26, 7
    s_add_u32 s44, s44, s3
    s_add_u32 s44, s44, {WS_G}
    s_mul_i32 s42, s65, {FS}
    s_lshl_b32 s3, s26, 3
    s_add_u32 s42, s42, s3
    s_add_u32 s42, s42, {WS_FG}
    v_lshlrev_b32 v3, 2, v1
    s_nop 7
    v_mul_f32 v5, {f2u(-math.log2(math.e)):#x}, v{GA}
    v_exp_f32 v5, v5
    s_nop 0
    v_add_f32 v5, 1.0, v5
    v_rcp_f32 v5, v5
    s_mov_b64 exec, 0xffffffff
    s_nop 0
    buffer_store_dword v5, v3, {WS}, s44 offen sc1
    s_mov_b64 exec, -1
    """)
    a("s_waitcnt vmcnt(0)")
    flag_store(a, [42])
    a.label("P2_IDLE2")
    for j in P2_BARS[1:]:
        a("s_barrier")
    a.label("P1_DONE")
    a.vreset()
    stamp(a, 7)


def gen_attention(a):
    VCUR, VNEXT, VBASE = 2, 3, 4
    Q, K, V, S, P, O, T = 10, 18, 34, 66, 98, 106, 122
    VG = 140
    a(f"""
    s_lshr_b32 s60, s48, 4
    s_lshl_b32 s3, s27, 1
    s_add_u32 s60, s60, s3
    s_and_b32 s61, s48, 15
    s_lshl_b32 s61, s61, 2
    s_add_u32 s61, s61, s49
    s_lshl_b32 s38, s60, 18
    s_add_u32 s38, s38, {WS_KV}
    s_lshl_b32 s41, s61, 7
    s_add_u32 s41, s41, {WS_G}
    v_and_b32 v6, 31, v1
    v_lshlrev_b32 v6, 2, v6
    s_lshl_b32 s3, s49, 14
    s_add_u32 s3, s3, {RING + 14336}
    v_add_u32 v5, s3, v9
    s_lshl_b32 s43, s62, 12
    v_add_u32 v{VBASE}, s43, v9
    v_mov_b32 v{VCUR}, v{VBASE}
    v_add_u32 v{VNEXT}, 32768, v{VBASE}
    s_mov_b32 s46, 32768
    s_mov_b32 s47, 8
    """)
    for r in range(16):
        a(f"v_mov_b32 v{O + r}, 0")
    stamp(a, 8)
    a(f"""
    s_barrier
    ds_read_b128 {vr(Q, 4)}, v5
    ds_read_b128 {vr(Q + 4, 4)}, v5 offset:1024
    ds_read_b128 {vr(V + 24, 4)}, v9
    ds_read_b128 {vr(V + 28, 4)}, v9 offset:1024
    """)
    for t in range(2):
        for j in range(2):
            a(f"ds_read_b128 {vr(K + t * 8 + j * 4, 4)}, v{VCUR} offset:{t * 8192 + j * 1024}")
        for j in range(2):
            a(f"ds_read_b128 {vr(V + t * 8 + j * 4, 4)}, v{VCUR} offset:{t * 8192 + 2048 + j * 1024}")
    a("s_waitcnt lgkmcnt(0)" if DIAG else "s_waitcnt lgkmcnt(8)")
    mfma(a, S + 16, V + 24, Q, None)
    mfma(a, S + 16, V + 28, Q + 4, S + 16)
    a("s_nop 15")

    def rowmax(src, dst):
        a(f"v_max3_f32 v{dst}, v{src}, v{src + 1}, v{src + 2}")
        for r in range(3, 15, 2):
            a(f"v_max3_f32 v{dst}, v{dst}, v{src + r}, v{src + r + 1}")
        a(f"v_max_f32 v{dst}, v{dst}, v{src + 15}")

    def crossmax(dst, tmp):
        a(f"v_mov_b32 v{tmp}, v{dst}")
        a("s_nop 1")
        a(f"v_permlane32_swap_b32 v{dst}, v{tmp}")
        a("s_nop 1")
        a(f"v_max_f32 v{dst}, v{dst}, v{tmp}")

    rowmax(S + 16, T)
    crossmax(T, T + 1)
    a(f"""
    v_mov_b32 v{T + 1}, 0
    v_cvt_pk_bf16_f32 v{T}, -v{T}, v{T + 1}
    v_cndmask_b32 v{Q + 6}, v{Q + 6}, v{T}, s[52:53]
    s_waitcnt lgkmcnt(0)
    s_nop 0
    """)
    mfma(a, S, K, Q, None)
    mfma(a, S, K + 4, Q + 4, S)
    for i in range(4):
        a(f"v_mov_b32 v{P + 4 + i}, 0")
        a(f"v_mov_b32 v{V + 28 + i}, 0")
    a("s_nop 7")
    PRIO = {2: 3, 3: 2, 0: 1, 1: 0} if not OPT.get("lad2") else {2: 2, 3: 1, 0: 1, 1: 0}
    stamp(a, 9)
    stamp2(a, 8)
    a.label("A_LOOP")
    for it, u in [(it, u) for it in range(8 if (DIAG and OPT.get('unroll')) else 1) for u in range(4)]:
        sc = S + (u % 2) * 16
        sn = S + ((u + 1) % 2) * 16
        kn = K + ((u + 1) % 2) * 8
        a("s_waitcnt lgkmcnt(0)")
        if u == 2:
            a("s_barrier")
            if it in (0, 3, 7) and OPT.get("unroll"):
                stamp(a, {0: 10, 3: 11, 7: 12}[it])
        a(f"s_setprio {PRIO[u]}")
        va = VCUR if u < 2 else VNEXT
        off = ((u + 2) % 4) * 8192
        pu = (u - 1) % 4

        def e(*idx):
            for i in idx:
                a(f"v_exp_f32 v{sc + i}, v{sc + i}")

        def c(i):
            a(f"v_cvt_pk_bf16_f32 v{P + i}, v{sc + 2 * i}, v{sc + 2 * i + 1}")

        e(0, 1)
        mfma(a, O, V + pu * 8 + 4, P + 4, O)
        for j in range(2):
            a(f"ds_read_b128 {vr(K + (u % 2) * 8 + j * 4, 4)}, v{va} offset:{off + j * 1024}")
        e(2, 3)
        c(0)
        e(4, 5)
        c(1)
        mfma(a, sn, kn, Q, None)
        for j in range(2):
            a(f"ds_read_b128 {vr(V + ((u + 2) % 4) * 8 + j * 4, 4)}, v{va} offset:{off + 2048 + j * 1024}")
        e(6, 7)
        c(2)
        e(8)
        c(3)
        e(9)
        mfma(a, sn, kn + 4, Q + 4, sn)
        e(10, 11)
        c(4)
        e(12, 13)
        c(5)
        mfma(a, O, V + u * 8, P, O)
        e(14, 15)
        c(6)
        c(7)
        if u == 3:
            sk = a.newlabel("HFLAG")
            a("s_add_u32 s3, s47, s58")
            a("s_cmp_lg_u32 s3, 8")
            a(f"s_cbranch_scc1 {sk}")
            a("s_cmp_eq_u32 s58, 1")
            a(f"s_cbranch_scc1 {sk}")
            a("s_waitcnt vmcnt(0)")
            flag_store(a, [59])
            a.label(sk)
            sk = a.newlabel("GLOAD")
            a("s_cmp_lg_u32 s47, 2")
            a(f"s_cbranch_scc1 {sk}")
            a(f"buffer_load_dword v{VG}, v6, {WS}, s41 offen sc1")
            a.label(sk)
            a(f"v_mov_b32 v{VCUR}, v{VNEXT}")
            a("s_add_u32 s46, s46, 32768")
            a("s_cmp_eq_u32 s46, 98304")
            a("s_cselect_b32 s46, 0, s46")
            a(f"v_add_u32 v{VNEXT}, s46, v{VBASE}")
            a("s_sub_u32 s47, s47, 1")
            a("s_cmp_lg_u32 s47, 0")
    a("s_cbranch_scc1 A_LOOP")
    mfma(a, O, V + 28, P + 4, O)
    stamp(a, 13)
    stamp2(a, 10)
    a(f"""
    s_lshl_b32 s43, s49, 12
    s_add_u32 s43, s43, 32768
    v_add_u32 v5, s43, v9
    s_waitcnt lgkmcnt(0)
    s_nop 11
    s_cmp_eq_u32 s62, 0
    s_cbranch_scc1 A_FIN
    """)
    for q in range(4):
        a(f"ds_write_b128 v5, {vr(O + 4 * q, 4)} offset:{q * 1024}")
    a("s_waitcnt lgkmcnt(0)")
    a("s_barrier")
    stamp_flush(a)
    a("s_endpgm")
    a.label("A_FIN")
    a("s_barrier")
    for q in range(4):
        a(f"ds_read_b128 {vr(S + 4 * q, 4)}, v5 offset:{q * 1024}")
    a("s_waitcnt lgkmcnt(0)")
    for p in range(8):
        a(f"v_pk_add_f32 {vr(O + 2 * p, 2)}, {vr(O + 2 * p, 2)}, {vr(S + 2 * p, 2)}")

    def get_l():
        a(f"v_mov_b32 v{T}, v{O + 12}")
        a(f"v_mov_b32 v{T + 1}, v{O + 12}")
        a("s_nop 1")
        a(f"v_permlane32_swap_b32 v{T}, v{T + 1}")
        for r in range(12, 16):
            a(f"v_cndmask_b32 v{O + r}, v{O + r}, 0, s[52:53]")

    get_l()
    a(f"""
    v_mov_b32 v{T + 2}, 0
    v_mov_b32 v{T + 3}, 0
    v_mov_b32 v{T + 4}, 0
    v_mov_b32 v{T + 5}, 0
    """)
    for p in range(8):
        a(f"v_pk_fma_f32 {vr(T + 2, 2)}, {vr(O + 2 * p, 2)}, {vr(T + 4, 2)}, {vr(T + 2, 2)}")
    a(f"""
    v_add_f32 v{T + 2}, v{T + 2}, v{T + 3}
    s_mov_b32 s44, {f2u(2.0 ** -30):#x}
    s_mov_b32 s45, {f2u(2.0 ** 60):#x}
    v_cmp_eq_f32 s[64:65], 0, v{T + 2}
    v_cmp_le_f32 s[66:67], s44, v{T + 1}
    v_cmp_ge_f32 vcc, s45, v{T + 1}
    s_and_b64 s[64:65], s[64:65], s[66:67]
    s_and_b64 s[64:65], s[64:65], vcc
    s_cmp_eq_u64 s[64:65], -1
    s_cbranch_scc0 A_FALL
    """)
    a.label("A_NORM")
    a(f"""
    v_rcp_f32 v{T + 2}, v{T + 1}
    s_lshl_b32 s43, s61, 4
    s_add_u32 s43, s43, s60
    s_lshl_b32 s44, s43, 11
    s_add_u32 s44, s44, {WS_O}
    s_lshr_b32 s45, s61, 1
    s_lshl_b32 s45, s45, 2
    s_lshr_b32 s43, s60, 2
    s_add_u32 s45, s45, s43
    s_mul_i32 s45, s45, {FS}
    s_and_b32 s43, s61, 1
    s_lshl_b32 s43, s43, 2
    s_and_b32 s3, s60, 3
    s_add_u32 s43, s43, s3
    s_lshl_b32 s43, s43, 3
    s_add_u32 s45, s45, s43
    s_add_u32 s45, s45, {WS_FO}
    s_waitcnt vmcnt(0)
    v_mul_f32 v{T + 2}, v{T + 2}, v{VG}
    v_mov_b32 v{T + 3}, v{T + 2}
    """)
    for p in range(8):
        a(f"v_pk_mul_f32 {vr(O + 2 * p, 2)}, {vr(O + 2 * p, 2)}, {vr(T + 2, 2)}")
    for p in range(8):
        a(f"v_cvt_pk_bf16_f32 v{P + p}, v{O + 2 * p}, v{O + 2 * p + 1}")
    a(f"buffer_store_dwordx4 {vr(P, 4)}, v9, {WS}, s44 offen sc1")
    a(f"buffer_store_dwordx4 {vr(P + 4, 4)}, v9, {WS}, s44 offen offset:1024 sc1")
    a("s_waitcnt vmcnt(0)")
    flag_store(a, [45])
    a.vreset()
    stamp_flush(a)
    a("s_endpgm")
    a.label("A_FALL")
    a(f"""
    v_cndmask_b32 v{Q + 6}, v{Q + 6}, 0, s[52:53]
    v_mov_b32 v{T + 6}, 0xff800000
    s_mov_b32 s44, s38
    s_mov_b32 s47, 64
    """)
    a.label("A_FL1")
    a(f"buffer_load_dwordx4 {vr(K, 4)}, v9, {WS}, s44 offen sc1")
    a(f"buffer_load_dwordx4 {vr(K + 4, 4)}, v9, {WS}, s44 offen offset:1024 sc1")
    a("s_waitcnt vmcnt(0)")
    mfma(a, S, K, Q, None)
    mfma(a, S, K + 4, Q + 4, S)
    a("s_nop 15")
    rowmax(S, T + 7)
    a(f"""
    v_max_f32 v{T + 6}, v{T + 6}, v{T + 7}
    s_add_u32 s44, s44, 4096
    s_sub_u32 s47, s47, 1
    s_cmp_lg_u32 s47, 0
    s_cbranch_scc1 A_FL1
    """)
    crossmax(T + 6, T + 7)
    for r in range(16):
        a(f"v_mov_b32 v{O + r}, 0")
    a("s_mov_b32 s44, s38")
    a("s_mov_b32 s47, 64")
    a.label("A_FL2")
    a(f"buffer_load_dwordx4 {vr(K, 4)}, v9, {WS}, s44 offen sc1")
    a(f"buffer_load_dwordx4 {vr(K + 4, 4)}, v9, {WS}, s44 offen offset:1024 sc1")
    a(f"buffer_load_dwordx4 {vr(V, 4)}, v9, {WS}, s44 offen offset:2048 sc1")
    a(f"buffer_load_dwordx4 {vr(V + 4, 4)}, v9, {WS}, s44 offen offset:3072 sc1")
    a("s_waitcnt vmcnt(0)")
    mfma(a, S, K, Q, None)
    mfma(a, S, K + 4, Q + 4, S)
    a("s_nop 15")
    for r in range(16):
        a(f"v_sub_f32 v{S + r}, v{S + r}, v{T + 6}")
    for r in range(16):
        a(f"v_exp_f32 v{S + r}, v{S + r}")
    a("s_nop 0")
    for p in range(8):
        a(f"v_cvt_pk_bf16_f32 v{P + p}, v{S + 2 * p}, v{S + 2 * p + 1}")
    a("s_nop 1")
    mfma(a, O, V, P, O)
    mfma(a, O, V + 4, P + 4, O)
    a("""
    s_add_u32 s44, s44, 4096
    s_sub_u32 s47, s47, 1
    s_cmp_lg_u32 s47, 0
    s_cbranch_scc1 A_FL2
    s_nop 15
    """)
    get_l()
    a("s_branch A_NORM")


def gen_aux(a):
    a.label("L_AUX")
    VXE, VXO, VC, VF = 10, 11, 12, 13
    a(f"""
    s_setprio 3
    s_sub_u32 s49, s26, 8
    s_lshl_b32 s3, s56, 7
    s_lshl_b32 s66, s49, 5
    s_add_u32 s3, s3, s66
    v_lshrrev_b32 v2, 3, v1
    v_and_b32 v3, 7, v1
    v_lshrrev_b32 v4, 4, v1
    v_add_u32 v5, s3, v2
    v_mul_u32_u24 v5, 896, v5
    v_xor_b32 v6, v3, v4
    v_lshl_add_u32 v{VXE}, v6, 4, v5
    v_xor_b32 v6, 4, v6
    v_lshl_add_u32 v{VXO}, v6, 4, v5
    v_add_u32 v{VXO}, {8 * 896 - 1024}, v{VXO}
    s_lshl_b32 s3, s49, 4
    v_lshrrev_b32 v4, 2, v1
    v_add_u32 v4, s3, v4
    v_mul_u32_u24 v4, 2688, v4
    v_and_b32 v5, 3, v1
    v_lshl_add_u32 v4, v5, 4, v4
    s_mul_i32 s65, s59, 56
    v_add_u32 v{VC}, s65, v4
    s_lshl_b32 s62, s49, 12
    s_lshl_b32 s63, s49, 10
    s_add_u32 s63, s63, {FB}
    s_lshr_b32 s68, s48, 3
    s_mul_i32 s68, s68, ROTC
    s_and_b32 s3, s48, ROTM
    s_add_u32 s68, s68, s3
    s_sub_u32 s3, s68, 7
    s_cmp_ge_u32 s68, 7
    s_cselect_b32 s68, s3, s68
    s_waitcnt lgkmcnt(0)
    """)
    if OPT.get("norot"):
        a("s_mov_b32 s68, 0")
    a("s_lshl_b32 s37, s68, 1")
    srd(a, 32, 4, X_BYTES)
    srd(a, 44, 6, WQKV_BYTES)

    def dma1(c):
        tag = f"c{c}"
        a(f"s_mul_i32 s36, s68, {64 * 2688}")
        for j in range(3):
            a(f"s_add_u32 m0, s63, {(c % 3) * BLK + j * 4096}")
            a(f"s_add_u32 s3, s36, {j * 56}")
            a.vmem(f"buffer_load_dwordx4 v{VC}, s[44:47], s3 offen lds", tag)
        a(f"s_add_u32 m0, s62, {c * BLK}")
        a("s_lshl_b32 s3, s68, 7")
        for i in range(4):
            if i == 2:
                a("s_add_u32 s3, s3, 12288")
            a.vmem(f"buffer_load_dwordx4 v{VXO if i % 2 else VXE}, s[32:35], s3 offen offset:{i * 1024} lds", tag)
        a("s_add_u32 s68, s68, 1")
        a("s_cmp_eq_u32 s68, 7")
        a("s_cselect_b32 s68, 0, s68")

    stamp(a, 12)
    dma1(0)
    stamp(a, 13)
    dma1(1)
    a(f"""
    v_mul_u32_u24 v4, 3584, v2
    v_lshrrev_b32 v5, 1, v3
    v_and_b32 v6, 2, v2
    v_xor_b32 v5, v5, v6
    s_lshr_b32 s3, s49, 1
    v_xor_b32 v5, s3, v5
    v_lshl_add_u32 v4, v5, 5, v4
    v_and_b32 v7, 1, v3
    v_lshl_add_u32 v4, v7, 4, v4
    s_lshl_b32 s64, s57, 1
    s_and_b32 s65, s49, 1
    s_add_u32 s64, s64, s65
    s_lshl_b32 s64, s64, 7
    v_add_u32 v{VF}, s64, v4
    s_cmp_ge_u32 s49, 2
    s_cselect_b64 s[12:13], s[14:15], s[12:13]
    s_cmp_eq_u32 s58, 1
    s_cselect_b32 s66, 0, {WG_BYTES}
    """)
    srd(a, 40, 12, "s66")
    srd(a, 28, 24, WS_SIZE)

    def dma2(j):
        a(f"s_add_u32 m0, s62, {W_BLK[j] * BLK}")
        a(f"s_mul_i32 s3, s37, {32 * 3584}")
        for i in range(4):
            if i:
                a(f"s_add_u32 s3, s3, {8 * 3584 - 1024}")
            a.vmem(f"buffer_load_dwordx4 v{VF}, s[40:43], s3 offen offset:{i * 1024} lds", f"f{j}")
        a("s_add_u32 s37, s37, 1")
        a("s_cmp_eq_u32 s37, 14")
        a("s_cselect_b32 s37, 0, s37")

    def issue2(b):
        for j in range(14):
            if W_ISSUE[j] == b:
                dma2(j)

    for c in range(7):
        stamp(a, 3 + c, grp=3)
        a.vwait(f"c{c}")
        a("s_barrier")
        if c + 2 <= 6:
            dma1(c + 2)
        issue2(c - 7)
    a(f"""
    s_lshr_b32 s60, s48, 4
    s_lshl_b32 s3, s27, 1
    s_add_u32 s60, s60, s3
    s_lshl_b32 s38, s60, 18
    s_add_u32 s38, s38, {WS_KV}
    s_lshl_b32 s39, s49, 13
    v_add_u32 v8, s39, v9
    v_mov_b32 v2, 0
    s_and_b32 s59, s48, 15
    s_lshl_b32 s59, s59, 2
    s_add_u32 s59, s59, s49
    s_lshl_b32 s61, s60, 2
    s_add_u32 s61, s61, s49
    s_mul_i32 s61, s61, {FS}
    s_add_u32 s61, s61, {WS_FKV}
    v_lshlrev_b32 v3, 3, v1
    v_add_u32 v3, s61, v3
    s_mul_i32 s61, s60, {FS}
    s_lshr_b32 s58, s59, 1
    s_lshl_b32 s3, s59, 3
    s_add_u32 s61, s61, s3
    s_add_u32 s61, s61, {WS_FQ}
    v_mov_b32 v4, s61
    v_cmp_gt_u32 vcc, 32, v1
    s_mul_i32 s58, s58, {FS}
    s_lshl_b32 s54, s60, 6
    v_cndmask_b32 v15, v4, v3, vcc
    s_add_u32 s54, s54, s59
    s_lshl_b32 s54, s54, 11
    s_add_u32 s54, s54, {WS_Q}
    s_lshl_b32 s55, s49, 14
    s_add_u32 s55, s55, {RING + 14336}
    s_mov_b32 s67, 0
    """)
    VKV = 8

    def kv(i):
        st = (i % 3) * 32768
        for half in range(2):
            a(f"s_add_u32 m0, s39, {st + half * 4096}")
            a(f"s_add_u32 s3, s38, {i * 32768 + half * 4096}")
            for j in range(4):
                a.vmem(f"buffer_load_dwordx4 v{VKV}, {WS}, s3 offen offset:{j * 1024} sc1 lds", f"kv{i}")

    def load_q():
        a("s_mov_b32 m0, s55")
        a("s_nop 0")
        a.vmem(f"buffer_load_dwordx4 v9, {WS}, s54 offen sc1 lds", "q")
        a.vmem(f"buffer_load_dwordx4 v9, {WS}, s54 offen offset:1024 sc1 lds", "q")

    for n, b in enumerate(P2_BARS):
        if b < 14:
            a.vwait(*[f"f{j}" for j in range(b, P2_BARS[n + 1])])
        if 1 <= b <= 12:
            stamp(a, 1 + b, grp=1)
        a("s_barrier")
        issue2(b)
        if b == 0:
            a.vmem(f"global_load_dwordx2 {vr(NONCE_V, 2)}, v2, s[22:23] sc1", "f2")
        if b == 10:
            a.vmem(f"buffer_load_dwordx2 {vr(16, 2)}, v15, {WS}, s52 offen sc1", "f13")
        if b == 12:
            nonce_check(a, 2)
            sk = a.newlabel("TRY")
            a(f"v_readfirstlane_b32 s50, v{NONCE_V}")
            a(f"v_readfirstlane_b32 s51, v{NONCE_V + 1}")
            a("s_nop 1")
            a(f"v_cmp_eq_u64 vcc, s[50:51], {vr(16, 2)}")
            a("s_nop 1")
            a("s_cmp_eq_u64 vcc, -1")
            a(f"s_cbranch_scc0 {sk}")
            a("s_mov_b32 s67, 1")
            kv(0)
            a.label(sk)
            a.vreset()
    stamp(a, 2)
    a("s_cmp_eq_u32 s67, 1")
    a("s_cbranch_scc1 L_KV0D")
    poll(a, 15, 52, 16)
    kv(0)
    a.label("L_KV0D")
    a.vreset()
    stamp(a, 3)
    load_q()
    kv(1)
    a("s_cmp_ge_u32 s48, 28")
    a("s_cbranch_scc1 L_LOADER")
    vm_at_split = list(a.vm)

    VW, VTR, VOWN, VRD, VTO, VO = 10, 11, 13, 14, 160, 162
    ACC, H, WF, VG = 16, 80, 144, 166
    a(f"""
    s_mul_i32 s56, s48, 37
    s_lshr_b32 s56, s56, 8
    s_mul_i32 s57, s56, 7
    s_sub_u32 s57, s48, s57
    s_lshl_b32 s3, s27, 2
    s_add_u32 s56, s56, s3
    s_lshl_b32 s46, s49, 14
    s_add_u32 s46, s46, {RING}
    s_mul_i32 s47, s56, {2 * 112}
    s_mul_i32 s3, s49, 28
    s_add_u32 s47, s47, s3
    s_lshl_b32 s47, s47, 10
    s_add_u32 s47, s47, {WS_H}
    s_mul_i32 s44, s49, {448 * 896}
    s_mul_i32 s45, s49, {112 * 896}
    s_add_u32 s62, s49, 4
    s_sub_u32 s3, s49, 2
    s_cmp_lt_u32 s49, 2
    s_cselect_b32 s62, s62, s3
    s_lshl_b32 s62, s62, 14
    """)
    a(f"""
    v_lshrrev_b32 v3, 3, v1
    v_bfe_u32 v4, v1, 1, 2
    v_and_b32 v5, 2, v3
    v_xor_b32 v4, v4, v5
    v_and_b32 v5, 1, v1
    v_mul_u32_u24 v6, 896, v3
    v_lshl_add_u32 v6, v4, 5, v6
    v_lshl_add_u32 v6, v5, 4, v6
    s_lshl_b32 s3, s57, 7
    v_add_u32 v{VW}, s3, v6
    v_lshrrev_b32 v3, 5, v1
    v_bfe_u32 v4, v1, 4, 1
    v_bfe_u32 v5, v1, 2, 2
    v_and_b32 v6, 3, v1
    v_lshl_add_u32 v7, v3, 2, v5
    v_lshlrev_b32 v7, 7, v7
    v_lshl_add_u32 v7, v6, 3, v7
    v_and_b32 v5, 2, v5
    v_xor_b32 v5, v5, v4
    v_lshl_add_u32 v6, v5, 5, v7
    v_add_u32 v{VTR}, s46, v6
    v_add_u32 v{VTO}, s62, v6
    v_xor_b32 v5, 2, v5
    v_lshl_add_u32 v6, v5, 5, v7
    v_add_u32 v{VTR + 1}, s46, v6
    v_add_u32 v{VTO + 1}, s62, v6
    v_add_u32 v{VOWN}, s46, v9
    s_lshl_b32 s3, s49, 12
    s_add_u32 s3, s3, {RING}
    v_add_u32 v{VRD}, s3, v9
    """)
    srd(a, 32, 16, WD_BYTES)

    def load_w(k):
        a(f"s_add_u32 m0, s46, {(k % 8) * 2048}")
        a(f"s_add_u32 s3, s44, {k * 16 * 896}")
        a.vmem(f"buffer_load_dwordx4 v{VW}, s[32:35], s3 offen lds", f"w{k}")
        a(f"s_add_u32 s3, s44, {k * 16 * 896 + 6144}")
        a.vmem(f"buffer_load_dwordx4 v{VW}, s[32:35], s3 offen offset:1024 lds", f"w{k}")

    def load_h(k, r):
        a(f"s_add_u32 s3, s47, {k * 1024 + r * 112 * 1024}")
        a.vmem(f"buffer_load_dwordx4 {vr(H + ((k % 8) * 2 + r) * 4, 4)}, v9, {WS}, s3 offen sc1", f"h{k}")

    a(f"""
    s_mul_i32 s3, s56, {FS}
    v_mov_b32 v3, s58
    v_mov_b32 v4, s3
    v_cmp_gt_u32 vcc, 4, v1
    v_and_b32 v5, 1, v1
    s_mov_b32 s61, {WS_FG}
    v_cndmask_b32 v3, v4, v3, vcc
    v_lshl_add_u32 v3, v5, 3, v3
    v_add_u32 v163, s61, v3
    """)
    a(f"""
    v_and_b32 v15, 15, v1
    v_min_u32 v15, 13, v15
    v_lshlrev_b32 v15, 3, v15
    s_lshl_b32 s61, s56, 2
    s_add_u32 s61, s61, s49
    s_mul_i32 s61, s61, {FS}
    s_add_u32 s61, s61, {WS_FH}
    v_add_u32 v15, s61, v15
    v_cmp_gt_u32 vcc, 16, v1
    s_nop 1
    v_cndmask_b32 v15, v15, v163, vcc
    """)
    kv(2)
    a.vwait("q")
    a(f"s_setprio {OPT.get('gprio', 0)}")
    a("s_barrier")
    stamp(a, 4)
    for k in range(7):
        load_w(k)

    def trd(k):
        b = WF + (k % 2) * 8
        o = (k % 8) * 2048
        for ct in range(2):
            a(f"ds_read_b64_tr_b16 {vr(b + ct * 4, 2)}, v{VTR + ct} offset:{o}")
            a(f"ds_read_b64_tr_b16 {vr(b + ct * 4 + 2, 2)}, v{VTR + ct} offset:{o + 1024}")

    def step(k):
        a.vwait(f"h{k}", f"w{k + 1}")
        a("s_waitcnt lgkmcnt(0)")
        if k + 1 < 28:
            trd(k + 1)
        n = 0
        for r in range(2):
            for ct in range(2):
                d = ACC + (r * 2 + ct) * 16
                mfma(a, d, WF + (k % 2) * 8 + ct * 4, H + ((k % 8) * 2 + r) * 4, None if k == 0 else d)
                if k + 8 < 28:
                    if n == 0:
                        load_w(k + 8)
                    if n == 1:
                        load_h(k + 8, 0)
                    if n == 3:
                        load_h(k + 8, 1)
                n += 1

    spi = OPT.get("spi", 4)
    hs = OPT.get("hs", 3)
    plan = [0] * (hs + 1) + [spi] * (7 - hs) + [OPT.get("spl", 4)]
    k = 0
    for i in range(9):
        if i >= 1 and i + 2 <= 7:
            kv(i + 2)
        if i == 1:
            load_w(7)
        if i == hs:
            poll(a, 15, 52, WF)
            stamp(a, 5)
            for kk in range(8):
                load_h(kk, 0)
                load_h(kk, 1)
            trd(0)
        if i == 7:
            srd(a, 40, 8, WO_BYTES)
            for g4 in range(4):
                a(f"s_add_u32 m0, s62, {g4 * 4096}")
                for j in range(4):
                    if g4 == 3 and j == 3:
                        continue
                    a(f"s_add_u32 s3, s45, {g4 * 32 * 896 + j * 6144}")
                    a.vmem(f"buffer_load_dwordx4 v{VW}, s[40:43], s3 offen offset:{j * 1024} lds", "wo")
        for _ in range(plan[i]):
            if k < 28:
                step(k)
                k += 1
        a.vwait(f"kv{i + 1}")
        a("s_barrier")
        if i in (3, 7, 8):
            stamp(a, {3: 6, 7: 7, 8: 8}[i])
    a("s_setprio 3")
    while k < 28:
        step(k)
        k += 1
    stamp(a, 9)
    a(f"""
    v_and_b32 v15, 7, v1
    v_lshlrev_b32 v15, 3, v15
    s_lshl_b32 s61, s56, 2
    s_add_u32 s61, s61, s49
    s_mul_i32 s61, s61, {FS}
    s_add_u32 s61, s61, {WS_FO}
    """)
    poll(a, 15, 61, WF)
    stamp(a, 10)
    a(f"""
    s_lshl_b32 s47, s56, 6
    s_lshl_b32 s3, s49, 3
    s_add_u32 s47, s47, s3
    s_lshl_b32 s47, s47, 10
    s_add_u32 s47, s47, {WS_O}
    v_and_b32 v2, 31, v1
    v_lshlrev_b32 v3, 2, v2
    s_lshl_b32 s3, s56, 8
    s_add_u32 s3, s3, {WS_G}
    """)
    a.vmem(f"buffer_load_dword v{VG}, v3, {WS}, s3 offen sc1", "g")
    a.vmem(f"buffer_load_dword v{VG + 1}, v3, {WS}, s3 offen offset:128 sc1", "g")
    for k in range(8):
        for r in range(2):
            if k % 4 == 0:
                a(f"s_add_u32 s{64 + r}, s47, {r * 32768 + k * 1024}")
            a.vmem(f"buffer_load_dwordx4 {vr(H + (k * 2 + r) * 4, 4)}, v9, {WS}, s{64 + r} offen offset:{(k % 4) * 1024} sc1", f"o{k}")

    def tro(k):
        b = WF + (k % 2) * 8
        row = 28 * (k // 2) + 16 * (k % 2)
        for ct in range(2):
            a(f"ds_read_b64_tr_b16 {vr(b + ct * 4, 2)}, v{VTO + ct} offset:{row * 128}")
            a(f"ds_read_b64_tr_b16 {vr(b + ct * 4 + 2, 2)}, v{VTO + ct} offset:{row * 128 + 1024}")

    tro(0)
    srd(a, 32, 20, X_BYTES)
    a(f"""
    s_lshr_b32 s66, s49, 1
    s_and_b32 s67, s49, 1
    s_lshl_b32 s3, s56, 1
    s_add_u32 s3, s3, s66
    s_lshl_b32 s3, s3, 5
    v_add_u32 v2, s3, v2
    v_mul_u32_u24 v{VO}, 896, v2
    v_lshrrev_b32 v3, 5, v1
    v_lshl_add_u32 v{VO}, v3, 4, v{VO}
    s_lshl_b32 s63, s57, 7
    s_lshl_b32 s3, s67, 6
    s_add_u32 s63, s63, s3
    """)
    a.vwait("g")
    a(f"""
    v_sub_f32 v2, 1.0, v{VG}
    v_sub_f32 v4, 1.0, v{VG + 1}
    v_mov_b32 v3, v2
    v_mov_b32 v5, v4
    """)
    for p in range(32):
        a(f"v_pk_mul_f32 {vr(ACC + 2 * p, 2)}, {vr(ACC + 2 * p, 2)}, {'v[2:3]' if p < 16 else 'v[4:5]'}")
    for k in range(8):
        a.vwait(f"o{k}")
        a("s_waitcnt lgkmcnt(0)")
        if k < 7:
            tro(k + 1)
        for r in range(2):
            for ct in range(2):
                d = ACC + (r * 2 + ct) * 16
                mfma(a, d, WF + (k % 2) * 8 + ct * 4, H + (k * 2 + r) * 4, d)
    a("s_nop 15")
    stamp(a, 11)
    for t in range(4):
        for q in range(4):
            a(f"ds_write_b128 v{VOWN}, {vr(ACC + t * 16 + q * 4, 4)} offset:{t * 4096 + q * 1024}")
    a("s_waitcnt lgkmcnt(0)")
    a("s_barrier")
    for w in range(4):
        for q in range(4):
            a(f"ds_read_b128 {vr(ACC + w * 16 + q * 4, 4)}, v{VRD} offset:{w * 16384 + q * 1024}")
        if w == 2:
            a("s_waitcnt lgkmcnt(4)")
            for p in range(8):
                a(f"v_pk_add_f32 {vr(H + 2 * p, 2)}, {vr(ACC + 2 * p, 2)}, {vr(ACC + 16 + 2 * p, 2)}")
    a("s_waitcnt lgkmcnt(0)")
    for p in range(8):
        a(f"v_pk_add_f32 {vr(ACC + 32 + 2 * p, 2)}, {vr(ACC + 32 + 2 * p, 2)}, {vr(ACC + 48 + 2 * p, 2)}")
    for p in range(8):
        a(f"v_pk_add_f32 {vr(H + 2 * p, 2)}, {vr(H + 2 * p, 2)}, {vr(ACC + 32 + 2 * p, 2)}")
    for p in range(8):
        a(f"v_cvt_pk_bf16_f32 v{ACC + p}, v{H + 2 * p}, v{H + 2 * p + 1}")
    a("s_nop 1")
    for pr in range(2):
        a(f"v_permlane32_swap_b32 v{ACC + 4 * pr}, v{ACC + 4 * pr + 2}")
        a(f"v_permlane32_swap_b32 v{ACC + 4 * pr + 1}, v{ACC + 4 * pr + 3}")
    for pr in range(2):
        a(f"buffer_store_dwordx4 {vr(ACC + 4 * pr, 4)}, v{VO}, s[32:35], s63 offen offset:{32 * pr}")
    stamp_flush(a)
    a("s_endpgm")

    a.label("L_LOADER")
    a.vm = list(vm_at_split)
    a(f"""
    v_and_b32 v3, 1, v1
    v_lshlrev_b32 v3, 3, v3
    s_add_u32 s61, s58, {WS_FG}
    """)
    kv(2)
    a.vwait("q")
    a("s_barrier")
    for i in range(7):
        if i >= 1 and i + 2 <= 7:
            kv(i + 2)
        if i == 2:
            poll(a, 3, 61, 16)
        a.vwait(f"kv{i + 1}")
        a("s_barrier")
    stamp_flush(a)
    a.label("L_END")
    a("s_endpgm")


def main():
    global DIAG
    DIAG = os.environ.get("DIAG", "0") == "1"
    for kvp in os.environ.get("OPT", "").split(","):
        if kvp:
            k, _, v = kvp.partition("=")
            OPT[k] = int(v) if v else 1
    ref = open(f"cdna_kernels/{NAME}.s.ref").read().split("\n")
    head = [l for l in ref if l.startswith(";") and "@launch" not in l]
    a = Asm()
    for l in head:
        a.raw(l)
    a.raw("; @launch grid=(256,1,1) block=(768,1,1) lds=163840")
    a.raw('.amdgcn_target "amdgcn-amd-amdhsa--gfx950"')
    a.raw(".text")
    kn = NAME + "_kernel"
    a.raw(f".globl {kn}")
    a.raw(".p2align 8")
    a.raw(f".type {kn},@function")
    a.label(kn)
    gen_prologue(a)
    gen_p1_compute(a)
    gen_attention(a)
    gen_aux(a)
    a.raw('.section .rodata,"a"')
    out = a.text().replace("ROTC", str(OPT.get("rotc", 2))).replace("ROTM", str(OPT.get("rotm", 7))) + f""".p2align 6
.amdhsa_kernel {kn}
  .amdhsa_next_free_vgpr 168
  .amdhsa_next_free_sgpr 102
  .amdhsa_accum_offset 168
  .amdhsa_group_segment_fixed_size 0
  .amdhsa_kernarg_size 88
  .amdhsa_user_sgpr_count 2
  .amdhsa_user_sgpr_kernarg_segment_ptr 1
  .amdhsa_system_sgpr_workgroup_id_x 1
.end_amdhsa_kernel
"""
    path = sys.argv[1] if len(sys.argv) > 1 else f"cdna_kernels/{NAME}.s"
    open(path, "w").write(out)


if __name__ == "__main__":
    main()
```

```python
import math
import os
import struct
import sys

NAME = "gated_mix__mha_block__geglu_ffn__prompt"

WS_Q = 0
WS_KV = 2 << 20
WS_H = 6 << 20
WS_O = 14 << 20
WS_G = 20 << 20
WS_F = 21 << 20
FS = 4352
WS_FKV = WS_F
WS_FQ = WS_F + 64 * FS
WS_FG = WS_F + 80 * FS
WS_FH = WS_F + 112 * FS
WS_FO = WS_F + 240 * FS
WS_D = 23 << 20
WS_SIZE = 24 << 20

X_BYTES = 2048 * 448 * 2
WQKV_BYTES = 448 * 1344 * 2
WG_BYTES = 448 * 1792 * 2
WD_BYTES = 1792 * 448 * 2
WO_BYTES = 448 * 448 * 2
GW_BYTES = 448 * 2

BLK = 16384
FB = 7 * BLK
L_NONCE = 0
W_BLK = [8, 9, 7, 8, 9, 0, 7, 8, 1, 9, 2, 7, 8, 3]
W_ISSUE = [-2, -1, 0, 1, 2, 2, 3, 4, 4, 5, 6, 7, 8, 8]
P2_BARS = [0, 1, 2, 3, 4, 5, 6, 7, 8, 10, 12, 14]
RING = 98304

DIAG = False
OPT = {}

WS = "s[28:31]"
NONCE_V = 164
HP = 144


def f2u(x):
    return struct.unpack("<I", struct.pack("<f", x))[0]


class Asm:
    def __init__(self):
        self.L = []
        self.vm = []
        self.nlab = 0

    def __call__(self, s):
        for line in s.strip("\n").split("\n"):
            if line.strip():
                self.L.append("    " + line.strip())

    def label(self, s):
        self.L.append(s + ":")

    def raw(self, s):
        self.L.append(s)

    def text(self):
        return "\n".join(self.L) + "\n"

    def newlabel(self, p):
        self.nlab += 1
        return f"{p}_{self.nlab}"

    def vmem(self, s, tag):
        self(s)
        self.vm.append(tag)

    def vwait(self, *tags):
        last = -1
        for i, t in enumerate(self.vm):
            if t in tags:
                last = i
        if last < 0:
            return
        n = len(self.vm) - 1 - last
        assert n <= 63
        self(f"s_waitcnt vmcnt({n})")
        self.vm = self.vm[last + 1:]

    def vreset(self):
        self.vm = []


def vr(b, n):
    return f"v[{b}:{b + n - 1}]"


def stamp(a, i, real=False, grp=0):
    if DIAG and (grp == OPT.get("grp", 0) or i in (0, 1, 14, 15)):
        a(f"{'s_memrealtime' if real else 's_memtime'} s[{70 + 2 * i}:{71 + 2 * i}]")


def stamp2(a, i):
    stamp(a, i, grp=5)
    stamp(a, i + 1, True, grp=5)


def stamp_flush(a):
    if not DIAG:
        return
    stamp(a, 14)
    stamp(a, 15, True)
    a("s_waitcnt lgkmcnt(0)")
    a("s_mov_b64 exec, 1")
    for i in range(16):
        a(f"v_mov_b32 v{16 + i}, s{70 + 2 * i}")
    a("s_lshl_b32 s68, s2, 4")
    a("s_add_u32 s68, s68, s26")
    a("s_lshl_b32 s68, s68, 6")
    a(f"s_add_u32 s68, s68, {WS_D}")
    for q in range(4):
        a(f"buffer_store_dwordx4 {vr(16 + 4 * q, 4)}, off, {WS}, s68 offset:{16 * q}")


def srd(a, d, lo, nbytes):
    a(f"s_mov_b32 s{d}, s{lo}")
    a(f"s_and_b32 s{d + 1}, s{lo + 1}, 0xffff")
    a(f"s_mov_b32 s{d + 2}, {nbytes}")
    a(f"s_mov_b32 s{d + 3}, 0x20000")


def mfma(a, d, x, y, c):
    cs = "0" if c is None else vr(c, 16)
    a(f"v_mfma_f32_32x32x16_bf16 {vr(d, 16)}, {vr(x, 4)}, {vr(y, 4)}, {cs}")


def flag_store(a, sregs):
    a("s_mov_b64 exec, 1")
    for s in sregs:
        a.vmem(f"buffer_store_dwordx2 {vr(NONCE_V, 2)}, off, {WS}, s{s} sc1", "flag")
    a("s_mov_b64 exec, -1")


def make_tag(a, vdst, vtmp):
    a(f"""
    v_and_b32 v{vtmp}, 2, v1
    v_cmp_eq_u32 vcc, 0, v{vtmp}
    v_and_b32 v{vtmp}, 1, v1
    v_lshlrev_b32 v{vtmp}, 4, v{vtmp}
    v_cndmask_b32 v{vdst}, v{NONCE_V + 1}, v{NONCE_V}, vcc
    v_lshlrev_b32 v{vdst}, v{vtmp}, v{vdst}
    v_and_b32 v{vdst}, 0xffff0000, v{vdst}
    """)


def nonce_check(a, vzero):
    lp, dn = a.newlabel("NLOOP"), a.newlabel("NDONE")
    a("s_mov_b32 s69, 0x40000")
    a.label(lp)
    a(f"""
    v_cmp_ne_u32 vcc, 0, v{NONCE_V}
    s_sub_u32 s69, s69, 1
    s_cbranch_scc1 {dn}
    s_cbranch_vccnz {dn}
    global_load_dwordx2 {vr(NONCE_V, 2)}, v{vzero}, s[22:23] sc1
    s_waitcnt vmcnt(0)
    s_branch {lp}
    """)
    a.label(dn)


def poll(a, vaddr, soff, vtmp):
    lp, dn = a.newlabel("POLL"), a.newlabel("POLLD")
    a("s_mov_b32 s69, 0x40000")
    a.label(lp)
    a(f"buffer_load_dwordx2 {vr(vtmp, 2)}, v{vaddr}, {WS}, s{soff} offen sc1")
    a("s_waitcnt vmcnt(0)")
    a(f"v_cmp_eq_u64 vcc, s[50:51], {vr(vtmp, 2)}")
    a("s_sub_u32 s69, s69, 1")
    a(f"s_cbranch_scc1 {dn}")
    a("s_cmp_eq_u64 vcc, -1")
    a(f"s_cbranch_scc1 {dn}")
    a(f"s_sleep {OPT.get('sleep', 4)}")
    a(f"s_branch {lp}")
    a.label(dn)
    a.vreset()


def gen_prologue(a):
    a("""
    s_cmp_ge_u32 s2, 256
    s_cbranch_scc1 L_END
    """)
    stamp(a, 0)
    stamp(a, 1, True)
    a("""
    s_load_dwordx16 s[4:19], s[0:1], 0
    s_load_dwordx4 s[20:23], s[0:1], 64
    s_load_dwordx2 s[24:25], s[0:1], 80
    v_lshrrev_b32 v2, 6, v0
    v_and_b32 v1, 63, v0
    s_and_b32 s27, s2, 7
    v_readfirstlane_b32 s26, v2
    s_lshr_b32 s48, s2, 3
    s_and_b32 s56, s48, 7
    s_lshr_b32 s3, s27, 2
    s_lshl_b32 s3, s3, 3
    s_add_u32 s56, s56, s3
    s_lshr_b32 s57, s48, 3
    s_and_b32 s3, s27, 3
    s_lshl_b32 s3, s3, 2
    s_add_u32 s57, s57, s3
    s_cmp_ge_u32 s57, 14
    s_cselect_b32 s58, 1, 0
    s_mul_i32 s59, s57, 3
    v_lshlrev_b32 v9, 4, v1
    s_mov_b32 s52, 0
    s_mov_b32 s53, -1
    s_cmp_ge_u32 s26, 8
    s_cbranch_scc1 L_AUX
    """)


def gen_p1_compute(a):
    VXR, VT1, VT2 = 10, 18, 19
    XF, WF, AC1, AC2 = 24, 40, 56, 80
    NV = 150
    a(f"""
    s_and_b32 s49, s26, 3
    s_lshr_b32 s62, s26, 2
    s_lshl_b32 s61, s49, 12
    v_and_b32 v2, 31, v1
    v_lshrrev_b32 v3, 5, v1
    v_bfe_u32 v4, v1, 1, 3
    v_lshlrev_b32 v5, 7, v2
    v_add_u32 v5, s61, v5
    v_cmp_eq_u32 s[54:55], 28, v2
    """)
    for s in range(4):
        a(f"v_add_u32 v6, {2 * s}, v3")
        a("v_xor_b32 v6, v6, v4")
        a(f"v_lshl_add_u32 v{VXR + s}, v6, 4, v5")
        a(f"v_add_u32 v{VXR + 4 + s}, 65536, v{VXR + s}")
    a(f"""
    v_bfe_u32 v4, v1, 4, 1
    v_bfe_u32 v5, v1, 2, 2
    v_and_b32 v6, 3, v1
    v_lshlrev_b32 v6, 3, v6
    v_lshl_add_u32 v8, v3, 9, v6
    v_lshl_add_u32 v8, v5, 6, v8
    v_lshl_add_u32 v8, v4, 5, v8
    s_lshl_b32 s61, s62, 13
    s_add_u32 s61, s61, {FB}
    v_add_u32 v{VT1}, s61, v8
    v_lshl_add_u32 v7, v3, 10, v6
    v_lshl_add_u32 v7, v5, 7, v7
    v_lshl_add_u32 v7, v4, 13, v7
    s_lshl_b32 s61, s62, 12
    v_add_u32 v7, s61, v7
    v_and_b32 v5, 2, v5
    v_xor_b32 v5, v5, v4
    s_and_b32 s63, s26, 2
    v_xor_b32 v5, s63, v5
    v_lshl_add_u32 v{VT2}, v5, 5, v7
    v_xor_b32 v5, 1, v5
    v_lshl_add_u32 v{VT2 + 1}, v5, 5, v7
    v_add_u32 v{VT2 + 2}, {FB}, v{VT2}
    v_add_u32 v{VT2 + 3}, {FB}, v{VT2 + 1}
    s_waitcnt lgkmcnt(0)
    """)
    srd(a, 28, 24, WS_SIZE)
    sk = a.newlabel("NSKIP")
    a(f"""
    v_mov_b32 v{NV + 2}, 0
    s_lshl_b32 s3, s2, 4
    s_add_u32 s3, s3, s26
    s_cmp_lg_u32 s3, 7
    s_cbranch_scc1 {sk}
    s_memrealtime s[50:51]
    s_waitcnt lgkmcnt(0)
    s_mul_i32 s44, s51, 0x7f4a7c15
    s_mul_i32 s45, s50, 0x9e3779b9
    s_mul_hi_u32 s51, s50, 0x7f4a7c15
    s_mul_i32 s50, s50, 0x7f4a7c15
    s_add_u32 s51, s51, s44
    s_add_u32 s51, s51, s45
    s_xor_b32 s50, s50, s51
    s_or_b32 s50, s50, 1
    v_mov_b32 v{NV + 4}, s50
    v_mov_b32 v{NV + 5}, s51
    s_mov_b64 exec, 1
    global_store_dwordx2 v{NV + 2}, {vr(NV + 4, 2)}, s[22:23] sc0 sc1
    s_mov_b64 exec, -1
    """)
    a.label(sk)
    qscale = math.log2(math.e) / math.sqrt(28.0)
    a("""
    s_lshl_b32 s60, s62, 1
    s_add_u32 s60, s60, s59
    s_lshl_b32 s64, s56, 2
    s_add_u32 s64, s64, s49
    s_and_b32 s43, s26, 1
    s_lshl_b32 s43, s43, 13
    s_lshl_b32 s61, s49, 12
    s_sub_u32 s43, s43, s61
    """)
    a("""
    v_and_b32 v2, 31, v1
    v_cmp_lt_u32 vcc, 10, v2
    v_mov_b32 v3, v2
    v_lshrrev_b32 v5, 5, v1
    v_addc_co_u32 v3, vcc, 0, v3, vcc
    v_cmp_lt_u32 vcc, 13, v2
    v_and_b32 v6, 1, v2
    v_and_b32 v7, 2, v2
    v_addc_co_u32 v3, vcc, 0, v3, vcc
    v_cmp_lt_u32 vcc, 24, v2
    v_lshlrev_b32 v6, 2, v6
    v_lshl_add_u32 v6, v7, 3, v6
    v_addc_co_u32 v3, vcc, 0, v3, vcc
    v_add_u32 v6, 11, v6
    v_cmp_lt_u32 vcc, 27, v2
    s_nop 1
    v_cndmask_b32 v3, v3, v6, vcc
    v_lshl_add_u32 v3, v5, 5, v3
    v_lshlrev_b32 v3, 4, v3
    s_cmp_ge_u32 s60, 32
    s_cselect_b64 vcc, -1, 0
    s_nop 0
    v_cndmask_b32 v23, v9, v3, vcc
    """)
    def ft_addr(dst, j):
        a(f"s_add_u32 s66, s60, {j}")
        a(f"s_mul_i32 s44, s66, {FS}")
        a("s_lshl_b32 s3, s64, 3")
        a("s_add_u32 s44, s44, s3")
        a(f"s_add_u32 s44, s44, {WS_FQ}")
        a("s_and_b32 s45, s66, 15")
        a("s_lshl_b32 s45, s45, 2")
        a("s_bfe_u32 s3, s64, 0x20001")
        a("s_add_u32 s45, s45, s3")
        a(f"s_mul_i32 s45, s45, {FS}")
        a("s_lshr_b32 s3, s66, 5")
        a("s_lshl_b32 s3, s3, 3")
        a("s_lshr_b32 s61, s64, 3")
        a("s_add_u32 s3, s3, s61")
        a("s_lshl_b32 s3, s3, 1")
        a("s_and_b32 s61, s64, 1")
        a("s_add_u32 s3, s3, s61")
        a("s_lshl_b32 s3, s3, 3")
        a("s_add_u32 s45, s45, s3")
        a(f"s_add_u32 s45, s45, {WS_FKV}")
        a("s_cmp_lt_u32 s66, 16")
        a(f"s_cselect_b32 s{dst}, s44, s45")

    for j in range(2):
        ft_addr(40 + j, j)
        a("s_and_b32 s61, s66, 15")
        a("s_lshl_b32 s61, s61, 6")
        a("s_add_u32 s61, s61, s64")
        a("s_cmp_lt_u32 s66, 16")
        a(f"s_cselect_b32 s{32 + 2 * j}, {f2u(qscale):#x}, 1.0")
        a(f"s_mov_b32 s{33 + 2 * j}, s{32 + 2 * j}")
        a(f"s_cselect_b32 s{36 + j}, 0, 0x3f80")
        a("s_cselect_b32 s3, 11, 12")
        a(f"s_cselect_b32 s44, {WS_Q}, {WS_KV}")
        a("s_lshl_b32 s61, s61, s3")
        a(f"s_add_u32 s{38 + j}, s61, s44")
    a("""
    s_cmp_ge_u32 s26, 4
    s_cselect_b32 s41, s40, s41
    s_cbranch_scc1 P1_Y
    s_cmp_ge_u32 s60, 32
    s_cbranch_scc1 P1_XV
    """)

    def xaddr(c, s):
        return (VXR + s, c * BLK) if c < 4 else (VXR + 4 + s, c * BLK - 65536)

    def reads2(k):
        c, s = divmod(k, 4)
        b = k % 2
        reg, off = xaddr(c, s)
        for r in range(2):
            a(f"ds_read_b128 {vr(XF + b * 8 + r * 4, 4)}, v{reg} offset:{off + r * 4096}")
        blk = W_BLK[k // 2]
        base, o = (VT2, blk * BLK) if blk < 4 else (VT2 + 2, blk * BLK - FB)
        o += (k % 2) * 2048
        for j in range(2):
            d = WF + b * 8 + j * 4
            a(f"ds_read_b64_tr_b16 {vr(d, 2)}, v{base + j} offset:{o}")
            a(f"ds_read_b64_tr_b16 {vr(d + 2, 2)}, v{base + j} offset:{o + 512}")

    def reads1(k, ns):
        c, s = divmod(k, 4)
        b = k % 2
        reg, off = xaddr(c, s)
        a(f"ds_read_b128 {vr(XF + b * 8, 4)}, v{reg} offset:{off}")
        for j in range(ns):
            d = WF + b * 8 + j * 4
            o = (c % 3) * BLK + j * 4096 + s * 1024
            a(f"ds_read_b64_tr_b16 {vr(d, 2)}, v{VT1} offset:{o}")
            a(f"ds_read_b64_tr_b16 {vr(d + 2, 2)}, v{VT1} offset:{o + 256}")

    def pass1(ns, swap):
        stamp(a, 2)
        a("s_barrier")
        stamp(a, 3)
        stamp(a, 3, grp=3)
        stamp2(a, 2)
        reads1(0, ns)
        for k in range(28):
            a("s_waitcnt lgkmcnt(0)")
            if (k + 1) % 4 == 0 and k + 1 < 28:
                a("s_barrier")
                stamp(a, 3 + (k + 1) // 4, grp=3)
            if k + 1 < 28:
                reads1(k + 1, ns)
            b = k % 2
            for j in range(ns):
                d = AC1 + j * 16
                w, x = WF + b * 8 + j * 4, XF + b * 8
                if swap:
                    mfma(a, d, x, w, None if k == 0 else d)
                else:
                    mfma(a, d, w, x, None if k == 0 else d)

    T = HP

    def epi_qk(d, j):
        sc = 32 + 2 * j
        for p in range(16):
            a(f"v_mul_f32 v{d + p}, s{sc}, v{d + p}")
        a(f"v_mov_b32 v{T}, s{36 + j}")
        for p in range(8):
            a(f"v_cvt_pk_bf16_f32 v{d + p}, v{d + 2 * p}, v{d + 2 * p + 1}")
        a(f"v_cndmask_b32 v{d + 6}, v{d + 6}, v{T}, s[52:53]")
        a(f"v_cndmask_b32 v{d + 7}, v{d + 7}, 0, s[52:53]")

    def epi_v(d, j):
        a(f"v_mov_b32 v{T}, 0x3f803f80")
        for p in range(8):
            a(f"v_cvt_pk_bf16_f32 v{d + p}, v{d + 2 * p}, v{d + 2 * p + 1}")
        for p in range(8):
            a(f"v_cndmask_b32 v{d + p}, v{d + p}, v{T}, s[54:55]")
        a(f"s_add_u32 s{38 + j}, s{38 + j}, 2048")

    def mid(ywave):
        a(f"global_load_dwordx2 {vr(NONCE_V, 2)}, v{NV + 2}, s[22:23] sc1")
        a("s_barrier")
        stamp(a, 4)
        stamp(a, 10, grp=3)
        stamp2(a, 4)
        for i in range(8):
            a(f"v_add_u32 v{VXR + i}, s43, v{VXR + i}")
        reads2(0)

    for lab, ns, swap in (("P1_XN", 2, False), ("P1_XV", 2, True), ("P1_YN", 1, False), ("P1_YV", 1, True)):
        if lab == "P1_YN":
            a.label("P1_Y")
            a("s_cmp_ge_u32 s60, 32")
            a("s_cbranch_scc1 P1_YV")
        a.label(lab)
        pass1(ns, swap)
        mid(ns == 1)
        for j in range(ns):
            (epi_v if swap else epi_qk)(AC1 + j * 16, j)
        if lab != "P1_YV":
            a("s_branch P2_START")
    a.label("P2_START")

    a("s_cmp_eq_u32 s58, 1")
    a("s_cbranch_scc1 P2_IDLE")

    def qkv_store(n):
        j, hf = divmod(n, 2)
        if j:
            sk = a.newlabel("YSKIP")
            a("s_cmp_ge_u32 s26, 4")
            a(f"s_cbranch_scc1 {sk}")
        a(f"buffer_store_dwordx4 {vr(AC1 + j * 16 + hf * 4, 4)}, v23, {WS}, s{38 + j} offen offset:{hf * 1024} sc1")
        if j:
            a.label(sk)

    def hooks(j):
        if j == OPT.get("fb", 6):
            a("s_waitcnt vmcnt(0)")
            nonce_check(a, NV + 2)
            flag_store(a, [40, 41])
            a.vreset()

    for k in range(28):
        a("s_waitcnt lgkmcnt(0)")
        bar = (k + 1) % 2 == 0 and (k + 1) // 2 in P2_BARS
        if bar:
            a("s_barrier")
            if (k + 1) // 2 <= 12:
                stamp(a, 1 + (k + 1) // 2, grp=1)
            if k + 1 == 28:
                stamp(a, 5)
        b = k % 2
        n0 = len(a.L)
        if k + 1 < 28:
            reads2(k + 1)
        rd = a.L[n0:]
        del a.L[n0:]
        n = 0
        for j in range(2):
            for r in range(2):
                d = AC2 + (j * 2 + r) * 16
                mfma(a, d, WF + b * 8 + j * 4, XF + b * 8 + r * 4, None if k == 0 else d)
                if n < 2:
                    a.L.extend(rd[3 * n:3 * n + 3])
                n += 1
        qs = OPT.get("qs", 2)
        if k % 2 == 0 and qs <= k < qs + 8:
            qkv_store((k - qs) // 2)
        if bar:
            hooks((k + 1) // 2)
    stamp(a, 6)
    stamp2(a, 6)
    VC3, VC1, VONE = 10, 12, 14
    c1 = -2.0 * math.log2(math.e) * math.sqrt(2.0 / math.pi)
    c3 = c1 * 0.044715
    a(f"""
    s_lshl_b32 s65, s56, 1
    s_and_b32 s3, s26, 1
    s_add_u32 s65, s65, s3
    s_lshl_b32 s63, s57, 2
    s_lshr_b32 s3, s26, 1
    s_add_u32 s63, s63, s3
    s_mul_i32 s40, s65, 112
    s_add_u32 s40, s40, s63
    s_lshl_b32 s40, s40, 11
    s_add_u32 s40, s40, {WS_H}
    s_add_u32 s42, s40, {112 * 1024}
    s_mul_i32 s44, s63, 37
    s_lshr_b32 s44, s44, 9
    s_mul_i32 s45, s44, 14
    s_sub_u32 s45, s63, s45
    s_lshl_b32 s59, s65, 2
    s_add_u32 s59, s59, s44
    s_mul_i32 s59, s59, {FS}
    s_lshl_b32 s45, s45, 3
    s_add_u32 s59, s59, s45
    s_add_u32 s59, s59, {WS_FH}
    v_mov_b32 v{VC3}, {f2u(c3):#x}
    v_mov_b32 v{VC3 + 1}, {f2u(c3):#x}
    v_mov_b32 v{VC1}, {f2u(c1):#x}
    v_mov_b32 v{VC1 + 1}, {f2u(c1):#x}
    v_mov_b32 v{VONE}, 1.0
    v_mov_b32 v{VONE + 1}, 1.0
    """)
    T2 = XF

    def epi_ffn(d, r, j):
        T = T2
        o = HP + (r * 2 + j) * 4
        for p in range(4):
            a(f"v_pk_mul_f32 {vr(T + 2 * p, 2)}, {vr(d + 2 * p, 2)}, {vr(d + 2 * p, 2)}")
        for p in range(4):
            a(f"v_pk_fma_f32 {vr(T + 2 * p, 2)}, {vr(T + 2 * p, 2)}, {vr(VC3, 2)}, {vr(VC1, 2)}")
        for p in range(4):
            a(f"v_pk_mul_f32 {vr(T + 2 * p, 2)}, {vr(T + 2 * p, 2)}, {vr(d + 2 * p, 2)}")
        for p in range(8):
            a(f"v_exp_f32 v{T + p}, v{T + p}")
        for p in range(4):
            a(f"v_pk_mul_f32 {vr(T + 8 + 2 * p, 2)}, {vr(d + 2 * p, 2)}, {vr(d + 8 + 2 * p, 2)}")
        for p in range(4):
            a(f"v_pk_add_f32 {vr(T + 2 * p, 2)}, {vr(T + 2 * p, 2)}, {vr(VONE, 2)}")
        for p in range(8):
            a(f"v_rcp_f32 v{T + p}, v{T + p}")
        a("s_nop 0")
        for p in range(4):
            a(f"v_pk_mul_f32 {vr(T + 2 * p, 2)}, {vr(T + 2 * p, 2)}, {vr(T + 8 + 2 * p, 2)}")
        for p in range(4):
            a(f"v_cvt_pk_bf16_f32 v{o + p}, v{T + 2 * p}, v{T + 2 * p + 1}")
        a(f"buffer_store_dwordx4 {vr(o, 4)}, v9, {WS}, s{40 + 2 * r} offen offset:{j * 1024} sc1")

    for j in range(2):
        for r in range(2):
            epi_ffn(AC2 + (j * 2 + r) * 16, r, j)
    a("s_branch P1_DONE")
    a.label("P2_IDLE")
    for n in range(4):
        qkv_store(n)
    hooks(OPT.get("fb", 6))
    a("s_waitcnt lgkmcnt(0)")
    a("s_cmp_lt_u32 s26, 2")
    a("s_cbranch_scc1 P2_GATE")
    srd(a, 32, 16, WD_BYTES)
    srd(a, 44, 8, WO_BYTES)
    a(f"""
    s_lshl_b32 s3, s56, 1
    s_and_b32 s61, s57, 1
    s_add_u32 s3, s3, s61
    s_mul_i32 s3, s3, 6
    s_add_u32 s3, s3, s26
    s_sub_u32 s3, s3, 2
    v_lshlrev_b32 v3, 7, v1
    s_mul_i32 s61, s3, {66 * 128}
    s_mul_i32 s3, s3, {17 * 128}
    buffer_load_dword v4, v3, s[32:35], s61 offen
    s_mov_b64 exec, 0x1ffff
    buffer_load_dword v5, v3, s[44:47], s3 offen
    s_add_u32 s61, s61, {64 * 128}
    s_mov_b64 exec, 3
    buffer_load_dword v6, v3, s[32:35], s61 offen
    s_mov_b64 exec, -1
    s_branch P2_IDLE2
    """)
    a.label("P2_GATE")
    srd(a, 32, 18, GW_BYTES)
    a(f"""
    v_lshrrev_b32 v3, 5, v1
    v_lshlrev_b32 v3, 4, v3
    s_and_b32 s3, s57, 1
    s_lshl_b32 s61, s3, 13
    s_lshl_b32 s44, s26, 12
    s_sub_u32 s61, s61, s44
    s_lshl_b32 s65, s56, 1
    s_add_u32 s65, s65, s3
    """)
    for i in range(8):
        a(f"v_add_u32 v{VXR + i}, s61, v{VXR + i}")
    GA = 24
    a("""
CHUNKORDER
    """)
    for half in range(2):
        for kk in range(14):
            k = half * 14 + kk
            if k % 4 == 0:
                a(f"s_bfe_u32 s37, s68, {0x40000 + k:#x}")
                a("s_lshl_b32 s37, s37, 7")
            a(f"buffer_load_dwordx4 {vr(AC2 + 4 * kk, 4)}, v3, s[32:35], s37 offen offset:{(k % 4) * 32}")
        a("s_waitcnt vmcnt(0)")
        for kk in range(14):
            k = half * 14 + kk
            reg, off = xaddr(k // 4, k % 4)
            a(f"ds_read_b128 {vr(WF + (k % 2) * 4, 4)}, v{reg} offset:{off}")
            a("s_waitcnt lgkmcnt(0)")
            mfma(a, GA, AC2 + 4 * kk, WF + (k % 2) * 4, None if k == 0 else GA)
    a(f"""
    s_lshl_b32 s44, s65, 8
    s_lshl_b32 s3, s26, 7
    s_add_u32 s44, s44, s3
    s_add_u32 s44, s44, {WS_G}
    s_mul_i32 s42, s65, {FS}
    s_lshl_b32 s3, s26, 3
    s_add_u32 s42, s42, s3
    s_add_u32 s42, s42, {WS_FG}
    v_lshlrev_b32 v3, 2, v1
    s_nop 7
    v_mul_f32 v5, {f2u(-math.log2(math.e)):#x}, v{GA}
    v_exp_f32 v5, v5
    s_nop 0
    v_add_f32 v5, 1.0, v5
    v_rcp_f32 v5, v5
    s_mov_b64 exec, 0xffffffff
    s_nop 0
    buffer_store_dword v5, v3, {WS}, s44 offen sc1
    s_mov_b64 exec, -1
    """)
    a("s_waitcnt vmcnt(0)")
    flag_store(a, [42])
    a.label("P2_IDLE2")
    for j in P2_BARS[1:]:
        a("s_barrier")
    a.label("P1_DONE")
    a.vreset()
    stamp(a, 7)


def gen_attention(a):
    VCUR, VNEXT, VBASE = 2, 3, 4
    Q, K, V, S, P, O, T = 10, 18, 34, 66, 98, 106, 122
    VG = 140
    a(f"""
    s_lshr_b32 s60, s48, 4
    s_lshl_b32 s3, s27, 1
    s_add_u32 s60, s60, s3
    s_and_b32 s61, s48, 15
    s_lshl_b32 s61, s61, 2
    s_add_u32 s61, s61, s49
    s_lshl_b32 s38, s60, 18
    s_add_u32 s38, s38, {WS_KV}
    s_lshl_b32 s41, s61, 7
    s_add_u32 s41, s41, {WS_G}
    v_and_b32 v6, 31, v1
    v_lshlrev_b32 v6, 2, v6
    s_lshl_b32 s3, s49, 14
    s_add_u32 s3, s3, {RING + 14336}
    v_add_u32 v5, s3, v9
    s_lshl_b32 s43, s62, 12
    v_add_u32 v{VBASE}, s43, v9
    v_mov_b32 v{VCUR}, v{VBASE}
    v_add_u32 v{VNEXT}, 32768, v{VBASE}
    s_mov_b32 s46, 32768
    s_mov_b32 s47, 8
    """)
    for r in range(16):
        a(f"v_mov_b32 v{O + r}, 0")
    make_tag(a, 7, 8)
    stamp(a, 8)
    a(f"""
    s_barrier
    ds_read_b128 {vr(Q, 4)}, v5
    ds_read_b128 {vr(Q + 4, 4)}, v5 offset:1024
    ds_read_b128 {vr(V + 24, 4)}, v9
    ds_read_b128 {vr(V + 28, 4)}, v9 offset:1024
    """)
    for t in range(2):
        for j in range(2):
            a(f"ds_read_b128 {vr(K + t * 8 + j * 4, 4)}, v{VCUR} offset:{t * 8192 + j * 1024}")
        for j in range(2):
            a(f"ds_read_b128 {vr(V + t * 8 + j * 4, 4)}, v{VCUR} offset:{t * 8192 + 2048 + j * 1024}")
    a("s_waitcnt lgkmcnt(0)" if DIAG else "s_waitcnt lgkmcnt(8)")
    mfma(a, S + 16, V + 24, Q, None)
    mfma(a, S + 16, V + 28, Q + 4, S + 16)
    a("s_nop 15")

    def rowmax(src, dst):
        a(f"v_max3_f32 v{dst}, v{src}, v{src + 1}, v{src + 2}")
        for r in range(3, 15, 2):
            a(f"v_max3_f32 v{dst}, v{dst}, v{src + r}, v{src + r + 1}")
        a(f"v_max_f32 v{dst}, v{dst}, v{src + 15}")

    def crossmax(dst, tmp):
        a(f"v_mov_b32 v{tmp}, v{dst}")
        a("s_nop 1")
        a(f"v_permlane32_swap_b32 v{dst}, v{tmp}")
        a("s_nop 1")
        a(f"v_max_f32 v{dst}, v{dst}, v{tmp}")

    rowmax(S + 16, T)
    crossmax(T, T + 1)
    a(f"""
    v_mov_b32 v{T + 1}, 0
    v_cvt_pk_bf16_f32 v{T}, -v{T}, v{T + 1}
    v_cndmask_b32 v{Q + 6}, v{Q + 6}, v{T}, s[52:53]
    s_waitcnt lgkmcnt(0)
    s_nop 0
    """)
    mfma(a, S, K, Q, None)
    mfma(a, S, K + 4, Q + 4, S)
    for i in range(4):
        a(f"v_mov_b32 v{P + 4 + i}, 0")
        a(f"v_mov_b32 v{V + 28 + i}, 0")
    a("s_nop 7")
    PRIO = {2: 3, 3: 2, 0: 1, 1: 0} if not OPT.get("lad2") else {2: 2, 3: 1, 0: 1, 1: 0}
    stamp(a, 9)
    stamp2(a, 8)
    a.raw(".p2align 6")
    if OPT.get("shift"):
        a("s_nop 0")
    a.label("A_LOOP")
    for it, u in [(it, u) for it in range(8 if (DIAG and OPT.get('unroll')) else 1) for u in range(4)]:
        sc = S + (u % 2) * 16
        sn = S + ((u + 1) % 2) * 16
        kn = K + ((u + 1) % 2) * 8
        a("s_waitcnt lgkmcnt(0)")
        if u == 2:
            a("s_barrier")
            if it in (0, 3, 7) and OPT.get("unroll"):
                stamp(a, {0: 10, 3: 11, 7: 12}[it])
        a(f"s_setprio {PRIO[u]}")
        va = VCUR if u < 2 else VNEXT
        off = ((u + 2) % 4) * 8192
        pu = (u - 1) % 4

        def e(*idx):
            for i in idx:
                a(f"v_exp_f32 v{sc + i}, v{sc + i}")

        def c(i):
            a(f"v_cvt_pk_bf16_f32 v{P + i}, v{sc + 2 * i}, v{sc + 2 * i + 1}")

        e(0, 1)
        mfma(a, O, V + pu * 8 + 4, P + 4, O)
        for j in range(2):
            a(f"ds_read_b128 {vr(K + (u % 2) * 8 + j * 4, 4)}, v{va} offset:{off + j * 1024}")
        e(2, 3)
        c(0)
        e(4, 5)
        c(1)
        mfma(a, sn, kn, Q, None)
        for j in range(2):
            a(f"ds_read_b128 {vr(V + ((u + 2) % 4) * 8 + j * 4, 4)}, v{va} offset:{off + 2048 + j * 1024}")
        e(6, 7)
        c(2)
        e(8)
        c(3)
        e(9)
        mfma(a, sn, kn + 4, Q + 4, sn)
        e(10, 11)
        c(4)
        e(12, 13)
        c(5)
        mfma(a, O, V + u * 8, P, O)
        e(14, 15)
        c(6)
        c(7)
        if u == 3:
            sk = a.newlabel("HFLAG")
            a("s_add_u32 s3, s47, s58")
            a("s_cmp_lg_u32 s3, 8")
            a(f"s_cbranch_scc1 {sk}")
            a("s_cmp_eq_u32 s58, 1")
            a(f"s_cbranch_scc1 {sk}")
            a("s_waitcnt vmcnt(0)")
            flag_store(a, [59])
            a.label(sk)
            sk = a.newlabel("GLOAD")
            a("s_cmp_lg_u32 s47, 2")
            a(f"s_cbranch_scc1 {sk}")
            a(f"buffer_load_dword v{VG}, v6, {WS}, s41 offen sc1")
            a.label(sk)
            a(f"v_mov_b32 v{VCUR}, v{VNEXT}")
            a("s_add_u32 s46, s46, 32768")
            a("s_cmp_eq_u32 s46, 98304")
            a("s_cselect_b32 s46, 0, s46")
            a(f"v_add_u32 v{VNEXT}, s46, v{VBASE}")
            a("s_sub_u32 s47, s47, 1")
            a("s_cmp_lg_u32 s47, 0")
    a("s_cbranch_scc1 A_LOOP")
    mfma(a, O, V + 28, P + 4, O)
    stamp(a, 13)
    stamp2(a, 10)
    a(f"""
    s_lshl_b32 s43, s49, 12
    s_add_u32 s43, s43, 32768
    v_add_u32 v5, s43, v9
    s_waitcnt lgkmcnt(0)
    s_nop 11
    s_cmp_eq_u32 s62, 0
    s_cbranch_scc1 A_FIN
    """)
    for q in range(4):
        a(f"ds_write_b128 v5, {vr(O + 4 * q, 4)} offset:{q * 1024}")
    a("s_waitcnt lgkmcnt(0)")
    a("s_barrier")
    stamp_flush(a)
    a("s_endpgm")
    a.label("A_FIN")
    a("s_barrier")
    stamp(a, 10)
    for q in range(4):
        a(f"ds_read_b128 {vr(S + 4 * q, 4)}, v5 offset:{q * 1024}")
    a("s_waitcnt lgkmcnt(0)")
    for p in (7, 0, 1, 2, 3, 4, 5, 6, 8, 9, 10, 11, 12, 13, 14):
        a(f"v_add_f32 v{O + p}, v{O + p}, v{S + p}")

    def get_l():
        a(f"v_mov_b32 v{T}, v{O + 7}")
        a(f"v_mov_b32 v{T + 1}, v{O + 7}")
        a(f"v_mov_b32 v{O + 7}, 0")
        a(f"v_mov_b32 v{O + 15}, 0")
        a(f"v_permlane32_swap_b32 v{T + 1}, v{T}")

    get_l()
    for c4 in range(4):
        a(f"v_mul_f32 v{T + 2 + c4}, 0, v{O + c4}")
    for p in range(4, 16):
        if p not in (7, 15):
            a(f"v_fmac_f32 v{T + 2 + p % 4}, 0, v{O + p}")
    a(f"""
    v_add_f32 v{T + 2}, v{T + 2}, v{T + 3}
    v_add_f32 v{T + 4}, v{T + 4}, v{T + 5}
    v_add_f32 v{T + 2}, v{T + 2}, v{T + 4}
    s_mov_b32 s44, {f2u(2.0 ** -30):#x}
    s_mov_b32 s45, {f2u(2.0 ** 60):#x}
    v_cmp_eq_f32 s[64:65], 0, v{T + 2}
    v_cmp_le_f32 s[66:67], s44, v{T + 1}
    v_cmp_ge_f32 vcc, s45, v{T + 1}
    s_and_b64 s[64:65], s[64:65], s[66:67]
    s_and_b64 s[64:65], s[64:65], vcc
    s_cmp_eq_u64 s[64:65], -1
    s_cbranch_scc0 A_FALL
    """)
    a.label("A_NORM")
    stamp(a, 11)
    a(f"""
    v_rcp_f32 v{T + 2}, v{T + 1}
    s_lshl_b32 s43, s61, 4
    s_add_u32 s43, s43, s60
    s_lshl_b32 s44, s43, 11
    s_add_u32 s44, s44, {WS_O}
    s_waitcnt vmcnt(0)
    v_mul_f32 v{T + 2}, v{T + 2}, v{VG}
    """)
    for p in range(16):
        if p not in (7, 15):
            a(f"v_mul_f32 v{O + p}, v{O + p}, v{T + 2}")
    for p in range(8):
        a(f"v_cvt_pk_bf16_f32 v{P + p}, v{O + 2 * p}, v{O + 2 * p + 1}")
    stamp(a, 12)
    a(f"v_or_b32 v{P + 3}, v{P + 3}, v7")
    a(f"v_or_b32 v{P + 7}, v{P + 7}, v7")
    a(f"buffer_store_dwordx4 {vr(P, 4)}, v9, {WS}, s44 offen sc1")
    a(f"buffer_store_dwordx4 {vr(P + 4, 4)}, v9, {WS}, s44 offen offset:1024 sc1")
    stamp_flush(a)
    a("s_endpgm")
    a.label("A_FALL")
    a(f"""
    v_cndmask_b32 v{Q + 6}, v{Q + 6}, 0, s[52:53]
    v_mov_b32 v{T + 6}, 0xff800000
    s_mov_b32 s44, s38
    s_mov_b32 s47, 64
    """)
    a.label("A_FL1")
    a(f"buffer_load_dwordx4 {vr(K, 4)}, v9, {WS}, s44 offen sc1")
    a(f"buffer_load_dwordx4 {vr(K + 4, 4)}, v9, {WS}, s44 offen offset:1024 sc1")
    a("s_waitcnt vmcnt(0)")
    mfma(a, S, K, Q, None)
    mfma(a, S, K + 4, Q + 4, S)
    a("s_nop 15")
    rowmax(S, T + 7)
    a(f"""
    v_max_f32 v{T + 6}, v{T + 6}, v{T + 7}
    s_add_u32 s44, s44, 4096
    s_sub_u32 s47, s47, 1
    s_cmp_lg_u32 s47, 0
    s_cbranch_scc1 A_FL1
    """)
    crossmax(T + 6, T + 7)
    for r in range(16):
        a(f"v_mov_b32 v{O + r}, 0")
    a("s_mov_b32 s44, s38")
    a("s_mov_b32 s47, 64")
    a.label("A_FL2")
    a(f"buffer_load_dwordx4 {vr(K, 4)}, v9, {WS}, s44 offen sc1")
    a(f"buffer_load_dwordx4 {vr(K + 4, 4)}, v9, {WS}, s44 offen offset:1024 sc1")
    a(f"buffer_load_dwordx4 {vr(V, 4)}, v9, {WS}, s44 offen offset:2048 sc1")
    a(f"buffer_load_dwordx4 {vr(V + 4, 4)}, v9, {WS}, s44 offen offset:3072 sc1")
    a("s_waitcnt vmcnt(0)")
    mfma(a, S, K, Q, None)
    mfma(a, S, K + 4, Q + 4, S)
    a("s_nop 15")
    for r in range(16):
        a(f"v_sub_f32 v{S + r}, v{S + r}, v{T + 6}")
    for r in range(16):
        a(f"v_exp_f32 v{S + r}, v{S + r}")
    a("s_nop 0")
    for p in range(8):
        a(f"v_cvt_pk_bf16_f32 v{P + p}, v{S + 2 * p}, v{S + 2 * p + 1}")
    a("s_nop 1")
    mfma(a, O, V, P, O)
    mfma(a, O, V + 4, P + 4, O)
    a("""
    s_add_u32 s44, s44, 4096
    s_sub_u32 s47, s47, 1
    s_cmp_lg_u32 s47, 0
    s_cbranch_scc1 A_FL2
    s_nop 15
    """)
    get_l()
    a("s_branch A_NORM")


def gen_aux(a):
    a.label("L_AUX")
    VXE, VXO, VC, VF = 10, 11, 12, 13
    a(f"""
    s_setprio 3
    s_sub_u32 s49, s26, 8
    s_lshl_b32 s3, s56, 7
    s_lshl_b32 s66, s49, 5
    s_add_u32 s3, s3, s66
    v_lshrrev_b32 v2, 3, v1
    v_and_b32 v3, 7, v1
    v_lshrrev_b32 v4, 4, v1
    v_add_u32 v5, s3, v2
    v_mul_u32_u24 v5, 896, v5
    v_xor_b32 v6, v3, v4
    v_lshl_add_u32 v{VXE}, v6, 4, v5
    v_xor_b32 v6, 4, v6
    v_lshl_add_u32 v{VXO}, v6, 4, v5
    v_add_u32 v{VXO}, {8 * 896 - 1024}, v{VXO}
    s_lshl_b32 s3, s49, 4
    v_lshrrev_b32 v4, 2, v1
    v_add_u32 v4, s3, v4
    v_mul_u32_u24 v4, 2688, v4
    v_and_b32 v5, 3, v1
    v_lshl_add_u32 v4, v5, 4, v4
    s_mul_i32 s65, s59, 56
    v_add_u32 v{VC}, s65, v4
    s_lshl_b32 s62, s49, 12
    s_lshl_b32 s63, s49, 10
    s_add_u32 s63, s63, {FB}
CHUNKORDER
    s_waitcnt lgkmcnt(0)
    """)
    srd(a, 32, 4, X_BYTES)
    srd(a, 44, 6, WQKV_BYTES)

    def dma1(c):
        tag = f"c{c}"
        a(f"s_bfe_u32 s37, s68, {0x40000 + 4 * c:#x}")
        a(f"s_mul_i32 s36, s37, {64 * 2688}")
        for j in range(3):
            a(f"s_add_u32 m0, s63, {(c % 3) * BLK + j * 4096}")
            a(f"s_add_u32 s3, s36, {j * 56}")
            a.vmem(f"buffer_load_dwordx4 v{VC}, s[44:47], s3 offen lds", tag)
        a(f"s_add_u32 m0, s62, {c * BLK}")
        a("s_lshl_b32 s3, s37, 7")
        for i in range(4):
            if i == 2:
                a("s_add_u32 s3, s3, 12288")
            a.vmem(f"buffer_load_dwordx4 v{VXO if i % 2 else VXE}, s[32:35], s3 offen offset:{i * 1024} lds", tag)

    stamp(a, 12)
    dma1(0)
    stamp(a, 13)
    dma1(1)
    a(f"""
    v_mul_u32_u24 v4, 3584, v2
    v_lshrrev_b32 v5, 1, v3
    v_and_b32 v6, 2, v2
    v_xor_b32 v5, v5, v6
    s_lshr_b32 s3, s49, 1
    v_xor_b32 v5, s3, v5
    v_lshl_add_u32 v4, v5, 5, v4
    v_and_b32 v7, 1, v3
    v_lshl_add_u32 v4, v7, 4, v4
    s_lshl_b32 s64, s57, 1
    s_and_b32 s65, s49, 1
    s_add_u32 s64, s64, s65
    s_lshl_b32 s64, s64, 7
    v_add_u32 v{VF}, s64, v4
    s_cmp_ge_u32 s49, 2
    s_cselect_b64 s[12:13], s[14:15], s[12:13]
    s_cmp_eq_u32 s58, 1
    s_cselect_b32 s66, 0, {WG_BYTES}
    """)
    srd(a, 40, 12, "s66")
    srd(a, 28, 24, WS_SIZE)

    def dma2(j):
        a(f"s_add_u32 m0, s62, {W_BLK[j] * BLK}")
        a(f"s_bfe_u32 s37, s68, {0x40000 + 4 * (j // 2):#x}")
        a(f"s_mul_i32 s3, s37, {64 * 3584}")
        if j % 2:
            a(f"s_add_u32 s3, s3, {32 * 3584}")
        for i in range(4):
            if i:
                a(f"s_add_u32 s3, s3, {8 * 3584 - 1024}")
            a.vmem(f"buffer_load_dwordx4 v{VF}, s[40:43], s3 offen offset:{i * 1024} lds", f"f{j}")

    def issue2(b):
        for j in range(14):
            if W_ISSUE[j] == b:
                dma2(j)

    for c in range(7):
        stamp(a, 3 + c, grp=3)
        a.vwait(f"c{c}")
        a("s_barrier")
        if c + 2 <= 6:
            dma1(c + 2)
        issue2(c - 7)
    a(f"""
    s_lshr_b32 s60, s48, 4
    s_lshl_b32 s3, s27, 1
    s_add_u32 s60, s60, s3
    s_lshl_b32 s38, s60, 18
    s_add_u32 s38, s38, {WS_KV}
    s_lshl_b32 s39, s49, 13
    v_add_u32 v8, s39, v9
    v_mov_b32 v2, 0
    s_and_b32 s59, s48, 15
    s_lshl_b32 s59, s59, 2
    s_add_u32 s59, s59, s49
    s_lshl_b32 s61, s60, 2
    s_add_u32 s61, s61, s49
    s_mul_i32 s61, s61, {FS}
    s_add_u32 s61, s61, {WS_FKV}
    v_lshlrev_b32 v3, 3, v1
    v_add_u32 v3, s61, v3
    s_mul_i32 s61, s60, {FS}
    s_lshr_b32 s58, s59, 1
    s_lshl_b32 s3, s59, 3
    s_add_u32 s61, s61, s3
    s_add_u32 s61, s61, {WS_FQ}
    v_mov_b32 v4, s61
    v_cmp_gt_u32 vcc, 32, v1
    s_mul_i32 s58, s58, {FS}
    s_lshl_b32 s54, s60, 6
    v_cndmask_b32 v15, v4, v3, vcc
    s_add_u32 s54, s54, s59
    s_lshl_b32 s54, s54, 11
    s_add_u32 s54, s54, {WS_Q}
    s_lshl_b32 s55, s49, 14
    s_add_u32 s55, s55, {RING + 14336}
    s_mov_b32 s67, 0
    """)
    VKV = 8

    def kv(i):
        st = (i % 3) * 32768
        for half in range(2):
            a(f"s_add_u32 m0, s39, {st + half * 4096}")
            a(f"s_add_u32 s3, s38, {i * 32768 + half * 4096}")
            for j in range(4):
                a.vmem(f"buffer_load_dwordx4 v{VKV}, {WS}, s3 offen offset:{j * 1024} sc1 lds", f"kv{i}")

    def load_q():
        a("s_mov_b32 m0, s55")
        a("s_nop 0")
        a.vmem(f"buffer_load_dwordx4 v9, {WS}, s54 offen sc1 lds", "q")
        a.vmem(f"buffer_load_dwordx4 v9, {WS}, s54 offen offset:1024 sc1 lds", "q")

    for n, b in enumerate(P2_BARS):
        if b < 14:
            a.vwait(*[f"f{j}" for j in range(b, P2_BARS[n + 1])])
        if 1 <= b <= 12:
            stamp(a, 1 + b, grp=1)
        a("s_barrier")
        issue2(b)
        if b == 0:
            a.vmem(f"global_load_dwordx2 {vr(NONCE_V, 2)}, v2, s[22:23] sc1", "f2")
        if b == 10:
            a.vmem(f"buffer_load_dwordx2 {vr(16, 2)}, v15, {WS}, s52 offen sc1", "f13")
        if b == 12:
            nonce_check(a, 2)
            sk = a.newlabel("TRY")
            a(f"v_readfirstlane_b32 s50, v{NONCE_V}")
            a(f"v_readfirstlane_b32 s51, v{NONCE_V + 1}")
            a("s_nop 1")
            a(f"v_cmp_eq_u64 vcc, s[50:51], {vr(16, 2)}")
            a("s_nop 1")
            a("s_cmp_eq_u64 vcc, -1")
            a(f"s_cbranch_scc0 {sk}")
            a("s_mov_b32 s67, 1")
            kv(0)
            a.label(sk)
            a.vreset()
    stamp(a, 2)
    a("s_cmp_eq_u32 s67, 1")
    a("s_cbranch_scc1 L_KV0D")
    poll(a, 15, 52, 16)
    kv(0)
    a.label("L_KV0D")
    a.vreset()
    stamp(a, 3)
    load_q()
    kv(1)
    a("s_cmp_ge_u32 s48, 28")
    a("s_cbranch_scc1 L_LOADER")
    vm_at_split = list(a.vm)

    VW, VTR, VOWN, VRD, VTO, VO = 10, 11, 13, 14, 160, 162
    ACC, H, WF, VG = 16, 80, 144, 166
    a(f"""
    s_mul_i32 s56, s48, 37
    s_lshr_b32 s56, s56, 8
    s_mul_i32 s57, s56, 7
    s_sub_u32 s57, s48, s57
    s_lshl_b32 s3, s27, 2
    s_add_u32 s56, s56, s3
    s_lshl_b32 s46, s49, 14
    s_add_u32 s46, s46, {RING}
    s_mul_i32 s47, s56, {2 * 112}
    s_mul_i32 s3, s49, 28
    s_add_u32 s47, s47, s3
    s_lshl_b32 s47, s47, 10
    s_add_u32 s47, s47, {WS_H}
    s_mul_i32 s44, s49, {448 * 896}
    s_mul_i32 s45, s49, {112 * 896}
    s_add_u32 s62, s49, 4
    s_sub_u32 s3, s49, 2
    s_cmp_lt_u32 s49, 2
    s_cselect_b32 s62, s62, s3
    s_lshl_b32 s62, s62, 14
    """)
    a(f"""
    v_lshrrev_b32 v3, 3, v1
    v_bfe_u32 v4, v1, 1, 2
    v_and_b32 v5, 2, v3
    v_xor_b32 v4, v4, v5
    v_and_b32 v5, 1, v1
    v_mul_u32_u24 v6, 896, v3
    v_lshl_add_u32 v6, v4, 5, v6
    v_lshl_add_u32 v6, v5, 4, v6
    s_lshl_b32 s3, s57, 7
    v_add_u32 v{VW}, s3, v6
    v_lshrrev_b32 v3, 5, v1
    v_bfe_u32 v4, v1, 4, 1
    v_bfe_u32 v5, v1, 2, 2
    v_and_b32 v6, 3, v1
    v_lshl_add_u32 v7, v3, 2, v5
    v_lshlrev_b32 v7, 7, v7
    v_lshl_add_u32 v7, v6, 3, v7
    v_and_b32 v5, 2, v5
    v_xor_b32 v5, v5, v4
    v_lshl_add_u32 v6, v5, 5, v7
    v_add_u32 v{VTR}, s46, v6
    v_xor_b32 v5, 2, v5
    v_lshl_add_u32 v6, v5, 5, v7
    v_add_u32 v{VTR + 1}, s46, v6
    v_add_u32 v{VOWN}, s46, v9
    s_lshl_b32 s3, s49, 12
    s_add_u32 s3, s3, {RING}
    v_add_u32 v{VRD}, s3, v9
    """)
    srd(a, 32, 16, WD_BYTES)

    def load_w(k):
        a(f"s_add_u32 m0, s46, {(k % 8) * 2048}")
        a(f"s_add_u32 s3, s44, {k * 16 * 896}")
        a.vmem(f"buffer_load_dwordx4 v{VW}, s[32:35], s3 offen lds", f"w{k}")
        a(f"s_add_u32 s3, s44, {k * 16 * 896 + 6144}")
        a.vmem(f"buffer_load_dwordx4 v{VW}, s[32:35], s3 offen offset:1024 lds", f"w{k}")

    def load_h(k, r):
        a(f"s_add_u32 s3, s47, {k * 1024 + r * 112 * 1024}")
        a.vmem(f"buffer_load_dwordx4 {vr(H + ((k % 8) * 2 + r) * 4, 4)}, v9, {WS}, s3 offen sc1", f"h{k}")

    a(f"""
    s_mul_i32 s3, s56, {FS}
    v_mov_b32 v3, s58
    v_mov_b32 v4, s3
    v_cmp_gt_u32 vcc, 4, v1
    v_and_b32 v5, 1, v1
    s_mov_b32 s61, {WS_FG}
    v_cndmask_b32 v3, v4, v3, vcc
    v_lshl_add_u32 v3, v5, 3, v3
    v_add_u32 v163, s61, v3
    """)
    a(f"""
    v_and_b32 v15, 15, v1
    v_min_u32 v15, 13, v15
    v_lshlrev_b32 v15, 3, v15
    s_lshl_b32 s61, s56, 2
    s_add_u32 s61, s61, s49
    s_mul_i32 s61, s61, {FS}
    s_add_u32 s61, s61, {WS_FH}
    v_add_u32 v15, s61, v15
    v_cmp_gt_u32 vcc, 16, v1
    s_nop 1
    v_cndmask_b32 v15, v15, v163, vcc
    v_and_b32 v3, 31, v1
    v_lshlrev_b32 v3, 2, v3
    """)
    kv(2)
    a.vwait("q")
    a(f"s_setprio {OPT.get('gprio', 0)}")
    a("s_barrier")
    stamp(a, 4)
    for k in range(7):
        load_w(k)

    def trd(k):
        b = WF + (k % 2) * 8
        o = (k % 8) * 2048
        for ct in range(2):
            a(f"ds_read_b64_tr_b16 {vr(b + ct * 4, 2)}, v{VTR + ct} offset:{o}")
            a(f"ds_read_b64_tr_b16 {vr(b + ct * 4 + 2, 2)}, v{VTR + ct} offset:{o + 1024}")

    def step(k):
        a.vwait(f"h{k}", f"w{k + 1}")
        a("s_waitcnt lgkmcnt(0)")
        if k + 1 < 28:
            trd(k + 1)
        n = 0
        for r in range(2):
            for ct in range(2):
                d = ACC + (r * 2 + ct) * 16
                mfma(a, d, WF + (k % 2) * 8 + ct * 4, H + ((k % 8) * 2 + r) * 4, None if k == 0 else d)
                if k + 8 < 28:
                    if n == 0:
                        load_w(k + 8)
                    if n == 1:
                        load_h(k + 8, 0)
                    if n == 3:
                        load_h(k + 8, 1)
                n += 1

    spi = OPT.get("spi", 4)
    hs = OPT.get("hs", 3)
    plan = [0] * (hs + 1) + [spi] * (7 - hs) + [OPT.get("spl", 4)]
    k = 0
    for i in range(9):
        if i >= 1 and i + 2 <= 7:
            kv(i + 2)
        if i == 1:
            load_w(7)
        if i == hs:
            poll(a, 15, 52, WF)
            stamp(a, 5)
            for kk in range(8):
                load_h(kk, 0)
                load_h(kk, 1)
            a(f"""
            s_lshl_b32 s3, s56, 8
            s_add_u32 s3, s3, {WS_G}
            """)
            a.vmem(f"buffer_load_dword v{VG}, v3, {WS}, s3 offen sc1", "g")
            a.vmem(f"buffer_load_dword v{VG + 1}, v3, {WS}, s3 offen offset:128 sc1", "g")
            trd(0)
        if i == 7:
            srd(a, 40, 8, WO_BYTES)
            for g4 in range(4):
                a(f"s_add_u32 m0, s62, {g4 * 4096}")
                for j in range(4):
                    if g4 == 3 and j == 3:
                        continue
                    a(f"s_add_u32 s3, s45, {g4 * 32 * 896 + j * 6144}")
                    a.vmem(f"buffer_load_dwordx4 v{VW}, s[40:43], s3 offen offset:{j * 1024} lds", "wo")
        for _ in range(plan[i]):
            if k < 28:
                step(k)
                k += 1
        a.vwait(f"kv{i + 1}")
        a("s_barrier")
        if i in (3, 7, 8):
            stamp(a, {3: 6, 7: 7, 8: 8}[i])
    a(f"s_setprio {OPT.get('tprio', 0)}")
    while k < 28:
        step(k)
        k += 1
    stamp(a, 9)
    a.vwait("g", "wo")
    a(f"""
    v_sub_f32 v2, 1.0, v{VG}
    v_sub_f32 v4, 1.0, v{VG + 1}
    v_mov_b32 v3, v2
    v_mov_b32 v5, v4
    s_lshl_b32 s47, s56, 6
    s_lshl_b32 s3, s49, 3
    s_add_u32 s47, s47, s3
    s_lshl_b32 s47, s47, 10
    s_add_u32 s64, s47, {WS_O}
    s_add_u32 s65, s64, 32768
    s_add_u32 s44, s64, 4096
    s_add_u32 s45, s65, 4096
    s_mov_b32 s66, 15
    s_mov_b32 s69, 0x40000
    """)
    for p in range(32):
        a(f"v_pk_mul_f32 {vr(ACC + 2 * p, 2)}, {vr(ACC + 2 * p, 2)}, {'v[2:3]' if p < 16 else 'v[4:5]'}")
    TA = [2, 3, 4, 5, 6, 7, 10, 11]
    VTAG = 12
    make_tag(a, VTAG, 15)
    a("""
    v_lshrrev_b32 v15, 5, v1
    v_bfe_u32 v160, v1, 2, 2
    v_bfe_u32 v161, v1, 4, 1
    v_and_b32 v163, 3, v1
    v_lshlrev_b32 v163, 3, v163
    v_add_u32 v163, s62, v163
    """)
    for pat, (s0, s1) in enumerate(((0, 4), (8, 11), (14, 18), (22, 25))):
        a(f"v_mul_u32_u24 v{WF}, {s1 - s0}, v15")
        a(f"v_add3_u32 v{WF}, v{WF}, v160, {s0}")
        a(f"v_and_b32 v{WF + 1}, 2, v{WF}")
        a(f"v_xor_b32 v{WF + 1}, v{WF + 1}, v161")
        a(f"v_lshl_add_u32 v{WF}, v{WF}, 7, v163")
        a(f"v_lshl_add_u32 v{TA[2 * pat]}, v{WF + 1}, 5, v{WF}")
        a(f"v_xor_b32 v{TA[2 * pat + 1]}, 64, v{TA[2 * pat]}")
    a.label("O_LOOP")
    for hd in range(4):
        sk = a.newlabel("OSK")
        a(f"s_bitcmp1_b32 s66, {hd}")
        a(f"s_cbranch_scc0 {sk}")
        for u in range(2):
            for r in range(2):
                k = hd * 2 + u
                sreg = (64 if k < 4 else 44) + r
                a(f"buffer_load_dwordx4 {vr(H + (k * 2 + r) * 4, 4)}, v9, {WS}, s{sreg} offen offset:{(k % 4) * 1024} sc1")
        a.label(sk)
    a("s_waitcnt vmcnt(0)")
    for hd in range(4):
        sk = a.newlabel("OSK")
        hb = H + hd * 16
        a(f"s_bitcmp1_b32 s66, {hd}")
        a(f"s_cbranch_scc0 {sk}")
        for u in range(2):
            for ct in range(2):
                for sec in range(2):
                    a(f"ds_read_b64_tr_b16 {vr(WF + u * 8 + ct * 4 + sec * 2, 2)}, v{TA[(u * 2 + sec) * 2 + ct]} offset:{hd * 3584}")
        for q in range(4):
            a(f"v_xor_b32 v{hb + 4 * q + 3}, v{hb + 4 * q + 3}, v{VTAG}")
        a(f"v_or3_b32 v15, v{hb + 3}, v{hb + 7}, v{hb + 11}")
        a(f"v_or_b32 v15, v15, v{hb + 15}")
        a("v_cmp_gt_u32 vcc, 0x10000, v15")
        a("s_waitcnt lgkmcnt(0)")
        a("s_cmp_eq_u64 vcc, -1")
        a(f"s_cbranch_scc0 {sk}")
        a(f"s_bitset0_b32 s66, {hd}")
        for u in range(2):
            for r in range(2):
                for ct in range(2):
                    d = ACC + (r * 2 + ct) * 16
                    mfma(a, d, WF + u * 8 + ct * 4, hb + (u * 2 + r) * 4, d)
        a.label(sk)
    a(f"""
    s_cmp_eq_u32 s66, 0
    s_cbranch_scc1 O_DONE
    s_sub_u32 s69, s69, 1
    s_cbranch_scc1 O_DONE
    s_sleep {OPT.get('osleep', 1)}
    s_branch O_LOOP
    """)
    a.label("O_DONE")
    a.vreset()
    stamp(a, 10)
    srd(a, 32, 20, X_BYTES)
    a(f"""
    v_and_b32 v2, 31, v1
    s_lshr_b32 s66, s49, 1
    s_and_b32 s67, s49, 1
    s_lshl_b32 s3, s56, 1
    s_add_u32 s3, s3, s66
    s_lshl_b32 s3, s3, 5
    v_add_u32 v2, s3, v2
    v_mul_u32_u24 v{VO}, 896, v2
    v_lshrrev_b32 v3, 5, v1
    v_lshl_add_u32 v{VO}, v3, 4, v{VO}
    s_lshl_b32 s63, s57, 7
    s_lshl_b32 s3, s67, 6
    s_add_u32 s63, s63, s3
    """)
    stamp(a, 11)
    for t in range(4):
        for q in range(4):
            a(f"ds_write_b128 v{VOWN}, {vr(ACC + t * 16 + q * 4, 4)} offset:{t * 4096 + q * 1024}")
    a("s_waitcnt lgkmcnt(0)")
    a("s_barrier")
    for w in range(4):
        for q in range(4):
            a(f"ds_read_b128 {vr(ACC + w * 16 + q * 4, 4)}, v{VRD} offset:{w * 16384 + q * 1024}")
        if w == 2:
            a("s_waitcnt lgkmcnt(4)")
            for p in range(8):
                a(f"v_pk_add_f32 {vr(H + 2 * p, 2)}, {vr(ACC + 2 * p, 2)}, {vr(ACC + 16 + 2 * p, 2)}")
    a("s_waitcnt lgkmcnt(0)")
    for p in range(8):
        a(f"v_pk_add_f32 {vr(ACC + 32 + 2 * p, 2)}, {vr(ACC + 32 + 2 * p, 2)}, {vr(ACC + 48 + 2 * p, 2)}")
    for p in range(8):
        a(f"v_pk_add_f32 {vr(H + 2 * p, 2)}, {vr(H + 2 * p, 2)}, {vr(ACC + 32 + 2 * p, 2)}")
    for p in range(8):
        a(f"v_cvt_pk_bf16_f32 v{ACC + p}, v{H + 2 * p}, v{H + 2 * p + 1}")
    a("s_nop 1")
    for pr in range(2):
        a(f"v_permlane32_swap_b32 v{ACC + 4 * pr}, v{ACC + 4 * pr + 2}")
        a(f"v_permlane32_swap_b32 v{ACC + 4 * pr + 1}, v{ACC + 4 * pr + 3}")
    for pr in range(2):
        a(f"buffer_store_dwordx4 {vr(ACC + 4 * pr, 4)}, v{VO}, s[32:35], s63 offen offset:{32 * pr}")
    stamp_flush(a)
    a("s_endpgm")

    a.label("L_LOADER")
    a.vm = list(vm_at_split)
    a(f"""
    v_and_b32 v3, 1, v1
    v_lshlrev_b32 v3, 3, v3
    s_add_u32 s61, s58, {WS_FG}
    """)
    kv(2)
    a.vwait("q")
    a("s_barrier")
    for i in range(7):
        if i >= 1 and i + 2 <= 7:
            kv(i + 2)
        if i == 2:
            poll(a, 3, 61, 16)
        a.vwait(f"kv{i + 1}")
        a("s_barrier")
    stamp_flush(a)
    a.label("L_END")
    a("s_endpgm")


def chunk_order():
    if OPT.get("first0", 1):
        n, seq, lead = 6, 0x654321654321, 1
    else:
        n, seq, lead = 7, 0x65432106543210, 0
    L = f"""
    s_lshr_b32 s68, s48, 3
    s_mul_i32 s68, s68, {OPT.get("rotc", 2)}
    s_and_b32 s3, s48, {OPT.get("rotm", 7)}
    s_add_u32 s68, s68, s3
    s_sub_u32 s3, s68, {n}
    s_cmp_ge_u32 s68, {n}
    s_cselect_b32 s68, s3, s68
    s_sub_u32 s3, s68, {n}
    s_cmp_ge_u32 s68, {n}
    s_cselect_b32 s68, s3, s68
    s_lshl_b32 s3, s68, 2
    s_mov_b32 s68, {seq & 0xffffffff:#x}
    s_mov_b32 s69, {seq >> 32:#x}
    s_lshr_b64 s[68:69], s[68:69], s3
    s_lshl_b32 s68, s68, {4 * lead}
    """
    return "".join("    " + l.strip() + "\n" for l in L.strip().split("\n"))


def main():
    global DIAG
    DIAG = os.environ.get("DIAG", "0") == "1"
    for kvp in os.environ.get("OPT", "").split(","):
        if kvp:
            k, _, v = kvp.partition("=")
            OPT[k] = int(v) if v else 1
    ref = open(f"cdna_kernels/{NAME}.s.ref").read().split("\n")
    head = [l for l in ref if l.startswith(";") and "@launch" not in l]
    a = Asm()
    for l in head:
        a.raw(l)
    a.raw("; @launch grid=(256,1,1) block=(768,1,1) lds=163840")
    a.raw('.amdgcn_target "amdgcn-amd-amdhsa--gfx950"')
    a.raw(".text")
    kn = NAME + "_kernel"
    a.raw(f".globl {kn}")
    a.raw(".p2align 8")
    a.raw(f".type {kn},@function")
    a.label(kn)
    gen_prologue(a)
    gen_p1_compute(a)
    gen_attention(a)
    gen_aux(a)
    a.raw('.section .rodata,"a"')
    out = a.text().replace("    CHUNKORDER\n", chunk_order()) + f""".p2align 6
.amdhsa_kernel {kn}
  .amdhsa_next_free_vgpr 168
  .amdhsa_next_free_sgpr 102
  .amdhsa_accum_offset 168
  .amdhsa_group_segment_fixed_size 0
  .amdhsa_kernarg_size 88
  .amdhsa_user_sgpr_count 2
  .amdhsa_user_sgpr_kernarg_segment_ptr 1
  .amdhsa_system_sgpr_workgroup_id_x 1
.end_amdhsa_kernel
"""
    path = sys.argv[1] if len(sys.argv) > 1 else f"cdna_kernels/{NAME}.s"
    open(path, "w").write(out)


if __name__ == "__main__":
    main()
```

```python
import math
import os
import struct
import sys

NAME = "gated_mix__mha_block__geglu_ffn__prompt"

WS_Q = 0
WS_KV = 2 << 20
WS_H = 6 << 20
WS_O = 14 << 20
WS_G = 20 << 20
WS_F = 21 << 20
FS = 4352
WS_FKV = WS_F
WS_FQ = WS_F + 64 * FS
WS_FG = WS_F + 80 * FS
WS_FH = WS_F + 112 * FS
WS_FO = WS_F + 240 * FS
WS_D = 23 << 20
WS_SIZE = 24 << 20

X_BYTES = 2048 * 448 * 2
WQKV_BYTES = 448 * 1344 * 2
WG_BYTES = 448 * 1792 * 2
WD_BYTES = 1792 * 448 * 2
WO_BYTES = 448 * 448 * 2
GW_BYTES = 448 * 2

BLK = 16384
FB = 7 * BLK
L_NONCE = 0
W_BLK = [8, 9, 7, 8, 9, 0, 7, 8, 1, 9, 2, 7, 8, 3]
W_ISSUE = [-2, -1, 0, 1, 2, 2, 3, 4, 4, 5, 6, 7, 8, 8]
P2_BARS = [0, 1, 2, 3, 4, 5, 6, 7, 8, 10, 14]
RING = 98304

DIAG = False
OPT = {}

WS = "s[28:31]"
NONCE_V = 164
HP = 144


def f2u(x):
    return struct.unpack("<I", struct.pack("<f", x))[0]


class Asm:
    def __init__(self):
        self.L = []
        self.vm = []
        self.nlab = 0

    def __call__(self, s):
        for line in s.strip("\n").split("\n"):
            if line.strip():
                self.L.append("    " + line.strip())

    def label(self, s):
        self.L.append(s + ":")

    def raw(self, s):
        self.L.append(s)

    def text(self):
        return "\n".join(self.L) + "\n"

    def newlabel(self, p):
        self.nlab += 1
        return f"{p}_{self.nlab}"

    def vmem(self, s, tag):
        self(s)
        self.vm.append(tag)

    def vwait(self, *tags):
        last = -1
        for i, t in enumerate(self.vm):
            if t in tags:
                last = i
        if last < 0:
            return
        n = len(self.vm) - 1 - last
        assert n <= 63
        self(f"s_waitcnt vmcnt({n})")
        self.vm = self.vm[last + 1:]

    def vreset(self):
        self.vm = []


def vr(b, n):
    return f"v[{b}:{b + n - 1}]"


def stamp(a, i, real=False, grp=0):
    if DIAG and (grp == OPT.get("grp", 0) or i in (0, 1, 14, 15)):
        a(f"{'s_memrealtime' if real else 's_memtime'} s[{70 + 2 * i}:{71 + 2 * i}]")


def stamp2(a, i):
    stamp(a, i, grp=5)
    stamp(a, i + 1, True, grp=5)


def stamp_flush(a):
    if not DIAG:
        return
    stamp(a, 14)
    stamp(a, 15, True)
    a("s_waitcnt lgkmcnt(0)")
    a("s_mov_b64 exec, 1")
    for i in range(16):
        a(f"v_mov_b32 v{16 + i}, s{70 + 2 * i}")
    a("s_lshl_b32 s68, s2, 4")
    a("s_add_u32 s68, s68, s26")
    a("s_lshl_b32 s68, s68, 6")
    a(f"s_add_u32 s68, s68, {WS_D}")
    for q in range(4):
        a(f"buffer_store_dwordx4 {vr(16 + 4 * q, 4)}, off, {WS}, s68 offset:{16 * q}")


def srd(a, d, lo, nbytes):
    a(f"s_mov_b32 s{d}, s{lo}")
    a(f"s_and_b32 s{d + 1}, s{lo + 1}, 0xffff")
    a(f"s_mov_b32 s{d + 2}, {nbytes}")
    a(f"s_mov_b32 s{d + 3}, 0x20000")


def mfma(a, d, x, y, c):
    cs = "0" if c is None else vr(c, 16)
    a(f"v_mfma_f32_32x32x16_bf16 {vr(d, 16)}, {vr(x, 4)}, {vr(y, 4)}, {cs}")


def flag_store(a, sregs):
    a("s_mov_b64 exec, 1")
    for s in sregs:
        a.vmem(f"buffer_store_dwordx2 {vr(NONCE_V, 2)}, off, {WS}, s{s} sc1", "flag")
    a("s_mov_b64 exec, -1")


def make_tag(a, vdst, vtmp):
    a(f"""
    v_and_b32 v{vtmp}, 2, v1
    v_cmp_eq_u32 vcc, 0, v{vtmp}
    v_and_b32 v{vtmp}, 1, v1
    v_lshlrev_b32 v{vtmp}, 4, v{vtmp}
    v_cndmask_b32 v{vdst}, v{NONCE_V + 1}, v{NONCE_V}, vcc
    v_lshlrev_b32 v{vdst}, v{vtmp}, v{vdst}
    v_and_b32 v{vdst}, 0xffff0000, v{vdst}
    """)


def nonce_check(a, vzero):
    lp, dn = a.newlabel("NLOOP"), a.newlabel("NDONE")
    a("s_mov_b32 s69, 0x40000")
    a.label(lp)
    a(f"""
    v_cmp_ne_u32 vcc, 0, v{NONCE_V}
    s_sub_u32 s69, s69, 1
    s_cbranch_scc1 {dn}
    s_cbranch_vccnz {dn}
    global_load_dwordx2 {vr(NONCE_V, 2)}, v{vzero}, s[22:23] sc1
    s_waitcnt vmcnt(0)
    s_branch {lp}
    """)
    a.label(dn)


def poll(a, vaddr, soff, vtmp):
    lp, dn = a.newlabel("POLL"), a.newlabel("POLLD")
    a("s_mov_b32 s69, 0x40000")
    a.label(lp)
    a(f"buffer_load_dwordx2 {vr(vtmp, 2)}, v{vaddr}, {WS}, s{soff} offen sc1")
    a("s_waitcnt vmcnt(0)")
    a(f"v_cmp_eq_u64 vcc, s[50:51], {vr(vtmp, 2)}")
    a("s_sub_u32 s69, s69, 1")
    a(f"s_cbranch_scc1 {dn}")
    a("s_cmp_eq_u64 vcc, -1")
    a(f"s_cbranch_scc1 {dn}")
    a(f"s_sleep {OPT.get('sleep', 4)}")
    a(f"s_branch {lp}")
    a.label(dn)
    a.vreset()


def gen_prologue(a):
    a("""
    s_cmp_ge_u32 s2, 256
    s_cbranch_scc1 L_END
    """)
    stamp(a, 0)
    stamp(a, 1, True)
    a("""
    s_load_dwordx16 s[4:19], s[0:1], 0
    s_load_dwordx4 s[20:23], s[0:1], 64
    s_load_dwordx2 s[24:25], s[0:1], 80
    v_lshrrev_b32 v2, 6, v0
    v_and_b32 v1, 63, v0
    s_and_b32 s27, s2, 7
    v_readfirstlane_b32 s26, v2
    s_lshr_b32 s48, s2, 3
    s_and_b32 s56, s48, 7
    s_lshr_b32 s3, s27, 2
    s_lshl_b32 s3, s3, 3
    s_add_u32 s56, s56, s3
    s_lshr_b32 s57, s48, 3
    s_and_b32 s3, s27, 3
    s_lshl_b32 s3, s3, 2
    s_add_u32 s57, s57, s3
    s_cmp_ge_u32 s57, 14
    s_cselect_b32 s58, 1, 0
    s_mul_i32 s59, s57, 3
    v_lshlrev_b32 v9, 4, v1
    s_mov_b32 s52, 0
    s_mov_b32 s53, -1
    s_cmp_ge_u32 s26, 8
    s_cbranch_scc1 L_AUX
    """)


def gen_p1_compute(a):
    VXR, VT1, VT2 = 10, 18, 19
    XF, WF, AC1, AC2 = 24, 40, 56, 80
    NV = 150
    a(f"""
    s_and_b32 s49, s26, 3
    s_lshr_b32 s62, s26, 2
    s_lshl_b32 s61, s49, 12
    v_and_b32 v2, 31, v1
    v_lshrrev_b32 v3, 5, v1
    v_bfe_u32 v4, v1, 1, 3
    v_lshlrev_b32 v5, 7, v2
    v_add_u32 v5, s61, v5
    v_cmp_eq_u32 s[54:55], 28, v2
    v_cmp_le_u32 s[46:47], 28, v2
    """)
    for s in range(4):
        a(f"v_add_u32 v6, {2 * s}, v3")
        a("v_xor_b32 v6, v6, v4")
        a(f"v_lshl_add_u32 v{VXR + s}, v6, 4, v5")
        a(f"v_add_u32 v{VXR + 4 + s}, 65536, v{VXR + s}")
    a(f"""
    v_bfe_u32 v4, v1, 4, 1
    v_bfe_u32 v5, v1, 2, 2
    v_and_b32 v6, 3, v1
    v_lshlrev_b32 v6, 3, v6
    v_lshl_add_u32 v8, v3, 9, v6
    v_lshl_add_u32 v8, v5, 6, v8
    v_lshl_add_u32 v8, v4, 5, v8
    s_lshl_b32 s61, s62, 13
    s_add_u32 s61, s61, {FB}
    v_add_u32 v{VT1}, s61, v8
    v_lshl_add_u32 v7, v3, 10, v6
    v_lshl_add_u32 v7, v5, 7, v7
    v_lshl_add_u32 v7, v4, 13, v7
    s_lshl_b32 s61, s62, 12
    v_add_u32 v7, s61, v7
    v_and_b32 v5, 2, v5
    v_xor_b32 v5, v5, v4
    s_and_b32 s63, s26, 2
    v_xor_b32 v5, s63, v5
    v_lshl_add_u32 v{VT2}, v5, 5, v7
    v_xor_b32 v5, 1, v5
    v_lshl_add_u32 v{VT2 + 1}, v5, 5, v7
    v_add_u32 v{VT2 + 2}, {FB}, v{VT2}
    v_add_u32 v{VT2 + 3}, {FB}, v{VT2 + 1}
    s_waitcnt lgkmcnt(0)
    """)
    srd(a, 28, 24, WS_SIZE)
    sk = a.newlabel("NSKIP")
    a(f"""
    v_mov_b32 v{NV + 2}, 0
    s_lshl_b32 s3, s2, 4
    s_add_u32 s3, s3, s26
    s_cmp_lg_u32 s3, 7
    s_cbranch_scc1 {sk}
    s_memrealtime s[50:51]
    s_waitcnt lgkmcnt(0)
    s_mul_i32 s44, s51, 0x7f4a7c15
    s_mul_i32 s45, s50, 0x9e3779b9
    s_mul_hi_u32 s51, s50, 0x7f4a7c15
    s_mul_i32 s50, s50, 0x7f4a7c15
    s_add_u32 s51, s51, s44
    s_add_u32 s51, s51, s45
    s_xor_b32 s50, s50, s51
    s_or_b32 s50, s50, 1
    v_mov_b32 v{NV + 4}, s50
    v_mov_b32 v{NV + 5}, s51
    s_mov_b64 exec, 1
    global_store_dwordx2 v{NV + 2}, {vr(NV + 4, 2)}, s[22:23] sc0 sc1
    s_mov_b64 exec, -1
    """)
    a.label(sk)
    qscale = math.log2(math.e) / math.sqrt(28.0)
    a("""
    s_lshl_b32 s60, s62, 1
    s_add_u32 s60, s60, s59
    s_lshl_b32 s64, s56, 2
    s_add_u32 s64, s64, s49
    s_and_b32 s43, s26, 1
    s_lshl_b32 s43, s43, 13
    s_lshl_b32 s61, s49, 12
    s_sub_u32 s43, s43, s61
    """)
    a("""
    v_and_b32 v2, 31, v1
    v_cmp_lt_u32 vcc, 10, v2
    v_mov_b32 v3, v2
    v_lshrrev_b32 v5, 5, v1
    v_addc_co_u32 v3, vcc, 0, v3, vcc
    v_cmp_lt_u32 vcc, 13, v2
    v_and_b32 v6, 1, v2
    v_and_b32 v7, 2, v2
    v_addc_co_u32 v3, vcc, 0, v3, vcc
    v_cmp_lt_u32 vcc, 24, v2
    v_lshlrev_b32 v6, 2, v6
    v_lshl_add_u32 v6, v7, 3, v6
    v_addc_co_u32 v3, vcc, 0, v3, vcc
    v_add_u32 v6, 11, v6
    v_cmp_lt_u32 vcc, 27, v2
    s_nop 1
    v_cndmask_b32 v3, v3, v6, vcc
    v_lshl_add_u32 v3, v5, 5, v3
    v_lshlrev_b32 v3, 4, v3
    s_cmp_ge_u32 s60, 32
    s_cselect_b64 vcc, -1, 0
    s_nop 0
    v_cndmask_b32 v23, v9, v3, vcc
    """)
    def ft_addr(dst, j):
        a(f"s_add_u32 s66, s60, {j}")
        a(f"s_mul_i32 s44, s66, {FS}")
        a("s_lshl_b32 s3, s64, 3")
        a("s_add_u32 s44, s44, s3")
        a(f"s_add_u32 s44, s44, {WS_FQ}")
        a("s_and_b32 s45, s66, 15")
        a("s_lshl_b32 s45, s45, 2")
        a("s_bfe_u32 s3, s64, 0x20001")
        a("s_add_u32 s45, s45, s3")
        a(f"s_mul_i32 s45, s45, {FS}")
        a("s_lshr_b32 s3, s66, 5")
        a("s_lshl_b32 s3, s3, 3")
        a("s_lshr_b32 s61, s64, 3")
        a("s_add_u32 s3, s3, s61")
        a("s_lshl_b32 s3, s3, 1")
        a("s_and_b32 s61, s64, 1")
        a("s_add_u32 s3, s3, s61")
        a("s_lshl_b32 s3, s3, 3")
        a("s_add_u32 s45, s45, s3")
        a(f"s_add_u32 s45, s45, {WS_FKV}")
        a("s_cmp_lt_u32 s66, 16")
        a(f"s_cselect_b32 s{dst}, s44, s45")

    for j in range(2):
        ft_addr(40 + j, j)
        a("s_and_b32 s61, s66, 15")
        a("s_lshl_b32 s61, s61, 6")
        a("s_add_u32 s61, s61, s64")
        a("s_cmp_lt_u32 s66, 16")
        a(f"s_cselect_b32 s{32 + 2 * j}, {f2u(qscale):#x}, 1.0")
        a(f"s_mov_b32 s{33 + 2 * j}, s{32 + 2 * j}")
        a(f"s_cselect_b32 s{36 + j}, 0, 0x3f80")
        a("s_cselect_b32 s3, 11, 12")
        a(f"s_cselect_b32 s44, {WS_Q}, {WS_KV}")
        a("s_lshl_b32 s61, s61, s3")
        a(f"s_add_u32 s{38 + j}, s61, s44")
    a("""
    s_cmp_ge_u32 s26, 4
    s_cselect_b32 s41, s40, s41
    s_cbranch_scc1 P1_Y
    s_cmp_ge_u32 s60, 32
    s_cbranch_scc1 P1_XV
    """)

    def xaddr(c, s):
        return (VXR + s, c * BLK) if c < 4 else (VXR + 4 + s, c * BLK - 65536)

    def reads2(k):
        c, s = divmod(k, 4)
        b = k % 2
        reg, off = xaddr(c, s)
        for r in range(2):
            a(f"ds_read_b128 {vr(XF + b * 8 + r * 4, 4)}, v{reg} offset:{off + r * 4096}")
        blk = W_BLK[k // 2]
        base, o = (VT2, blk * BLK) if blk < 4 else (VT2 + 2, blk * BLK - FB)
        o += (k % 2) * 2048
        for j in range(2):
            d = WF + b * 8 + j * 4
            a(f"ds_read_b64_tr_b16 {vr(d, 2)}, v{base + j} offset:{o}")
            a(f"ds_read_b64_tr_b16 {vr(d + 2, 2)}, v{base + j} offset:{o + 512}")

    def reads1(k, ns):
        c, s = divmod(k, 4)
        b = k % 2
        reg, off = xaddr(c, s)
        a(f"ds_read_b128 {vr(XF + b * 8, 4)}, v{reg} offset:{off}")
        for j in range(ns):
            d = WF + b * 8 + j * 4
            o = (c % 3) * BLK + j * 4096 + s * 1024
            a(f"ds_read_b64_tr_b16 {vr(d, 2)}, v{VT1} offset:{o}")
            a(f"ds_read_b64_tr_b16 {vr(d + 2, 2)}, v{VT1} offset:{o + 256}")

    def pass1(ns, swap):
        stamp(a, 2)
        a("s_barrier")
        stamp(a, 3)
        stamp(a, 3, grp=3)
        stamp2(a, 2)
        reads1(0, ns)
        for k in range(28):
            a("s_waitcnt lgkmcnt(0)")
            if (k + 1) % 4 == 0 and k + 1 < 28:
                a("s_barrier")
                stamp(a, 3 + (k + 1) // 4, grp=3)
            if k + 1 < 28:
                reads1(k + 1, ns)
            b = k % 2
            for j in range(ns):
                d = AC1 + j * 16
                w, x = WF + b * 8 + j * 4, XF + b * 8
                if swap:
                    mfma(a, d, x, w, None if k == 0 else d)
                else:
                    mfma(a, d, w, x, None if k == 0 else d)

    T = HP

    def epi_qk(d, j):
        sc = 32 + 2 * j
        for p in range(16):
            a(f"v_mul_f32 v{d + p}, s{sc}, v{d + p}")
        a(f"v_mov_b32 v{T}, s{36 + j}")
        for p in range(8):
            a(f"v_cvt_pk_bf16_f32 v{d + p}, v{d + 2 * p}, v{d + 2 * p + 1}")
        a(f"v_cndmask_b32 v{d + 6}, v{d + 6}, v{T}, s[52:53]")
        a(f"v_cndmask_b32 v{d + 7}, v{d + 7}, 0, s[52:53]")

    def epi_v(d, j):
        a(f"v_mov_b32 v{T}, 0x3f803f80")
        a(f"v_cndmask_b32 v{T}, 0, v{T}, s[54:55]")
        for p in range(8):
            a(f"v_cvt_pk_bf16_f32 v{d + p}, v{d + 2 * p}, v{d + 2 * p + 1}")
        for p in range(8):
            a(f"v_cndmask_b32 v{d + p}, v{d + p}, v{T}, s[46:47]")
        a(f"s_add_u32 s{38 + j}, s{38 + j}, 2048")

    def mid(ywave):
        a(f"global_load_dwordx2 {vr(NONCE_V, 2)}, v{NV + 2}, s[22:23] sc1")
        a("s_barrier")
        stamp(a, 4)
        stamp(a, 10, grp=3)
        stamp2(a, 4)
        for i in range(8):
            a(f"v_add_u32 v{VXR + i}, s43, v{VXR + i}")
        reads2(0)

    for lab, ns, swap in (("P1_XN", 2, False), ("P1_XV", 2, True), ("P1_YN", 1, False), ("P1_YV", 1, True)):
        if lab == "P1_YN":
            a.label("P1_Y")
            a("s_cmp_ge_u32 s60, 32")
            a("s_cbranch_scc1 P1_YV")
        a.label(lab)
        pass1(ns, swap)
        mid(ns == 1)
        for j in range(ns):
            (epi_v if swap else epi_qk)(AC1 + j * 16, j)
        if lab != "P1_YV":
            a("s_branch P2_START")
    a.label("P2_START")

    a("s_cmp_eq_u32 s58, 1")
    a("s_cbranch_scc1 P2_IDLE")

    def qkv_store(n):
        j, hf = divmod(n, 2)
        if j:
            sk = a.newlabel("YSKIP")
            a("s_cmp_ge_u32 s26, 4")
            a(f"s_cbranch_scc1 {sk}")
        a(f"buffer_store_dwordx4 {vr(AC1 + j * 16 + hf * 4, 4)}, v23, {WS}, s{38 + j} offen offset:{hf * 1024} sc1")
        if j:
            a.label(sk)

    def hooks(j):
        if j == OPT.get("fb", 6):
            a("s_waitcnt vmcnt(0)")
            nonce_check(a, NV + 2)
            flag_store(a, [40, 41])
            a.vreset()

    for k in range(28):
        a("s_waitcnt lgkmcnt(0)")
        bar = (k + 1) % 2 == 0 and (k + 1) // 2 in P2_BARS[:-1]
        if bar:
            a("s_barrier")
            if (k + 1) // 2 <= 12:
                stamp(a, 1 + (k + 1) // 2, grp=1)
            if k + 1 == 28:
                stamp(a, 5)
        b = k % 2
        n0 = len(a.L)
        if k + 1 < 28:
            reads2(k + 1)
        rd = a.L[n0:]
        del a.L[n0:]
        n = 0
        for j in range(2):
            for r in range(2):
                d = AC2 + (j * 2 + r) * 16
                mfma(a, d, WF + b * 8 + j * 4, XF + b * 8 + r * 4, None if k == 0 else d)
                if n < 2:
                    a.L.extend(rd[3 * n:3 * n + 3])
                n += 1
        qs = OPT.get("qs", 2)
        if k % 2 == 0 and qs <= k < qs + 8:
            qkv_store((k - qs) // 2)
        if bar:
            hooks((k + 1) // 2)
        if k == 19 and OPT.get("xprio", 1):
            a("s_sub_u32 s3, 1, s62")
            a("s_cbranch_scc1 P2_NOPRIO")
            a("s_cmp_eq_u32 s62, 1")
            a("s_cbranch_scc1 P2_NOPRIO")
            a("s_setprio 2")
            a.label("P2_NOPRIO")
    stamp(a, 6)
    stamp2(a, 6)
    VC3, VC1, VONE = 10, 12, 14
    c1 = -2.0 * math.log2(math.e) * math.sqrt(2.0 / math.pi)
    c3 = c1 * 0.044715
    a(f"""
    s_lshl_b32 s65, s56, 1
    s_and_b32 s3, s26, 1
    s_add_u32 s65, s65, s3
    s_lshl_b32 s63, s57, 2
    s_lshr_b32 s3, s26, 1
    s_add_u32 s63, s63, s3
    s_mul_i32 s40, s65, 112
    s_add_u32 s40, s40, s63
    s_lshl_b32 s40, s40, 11
    s_add_u32 s40, s40, {WS_H}
    s_add_u32 s42, s40, {112 * 1024}
    s_mul_i32 s44, s63, 37
    s_lshr_b32 s44, s44, 9
    s_mul_i32 s45, s44, 14
    s_sub_u32 s45, s63, s45
    s_lshl_b32 s59, s65, 2
    s_add_u32 s59, s59, s44
    s_mul_i32 s59, s59, {FS}
    s_lshl_b32 s45, s45, 3
    s_add_u32 s59, s59, s45
    s_add_u32 s59, s59, {WS_FH}
    v_mov_b32 v{VC3}, {f2u(c3):#x}
    v_mov_b32 v{VC3 + 1}, {f2u(c3):#x}
    v_mov_b32 v{VC1}, {f2u(c1):#x}
    v_mov_b32 v{VC1 + 1}, {f2u(c1):#x}
    v_mov_b32 v{VONE}, 1.0
    v_mov_b32 v{VONE + 1}, 1.0
    """)
    T2 = XF

    def epi_ffn(d, r, j, packed):
        T = T2
        o = HP + (r * 2 + j) * 4
        if packed:
            for p in range(4):
                a(f"v_pk_mul_f32 {vr(T + 2 * p, 2)}, {vr(d + 2 * p, 2)}, {vr(d + 2 * p, 2)}")
            for p in range(4):
                a(f"v_pk_fma_f32 {vr(T + 2 * p, 2)}, {vr(T + 2 * p, 2)}, {vr(VC3, 2)}, {vr(VC1, 2)}")
            for p in range(4):
                a(f"v_pk_mul_f32 {vr(T + 2 * p, 2)}, {vr(T + 2 * p, 2)}, {vr(d + 2 * p, 2)}")
        else:
            for p in range(8):
                a(f"v_mul_f32 v{T + p}, v{d + p}, v{d + p}")
            for p in range(8):
                a(f"v_fma_f32 v{T + p}, v{T + p}, v{VC3}, v{VC1}")
            for p in range(8):
                a(f"v_mul_f32 v{T + p}, v{T + p}, v{d + p}")
        for p in range(8):
            a(f"v_exp_f32 v{T + p}, v{T + p}")
        if packed:
            for p in range(4):
                a(f"v_pk_mul_f32 {vr(T + 8 + 2 * p, 2)}, {vr(d + 2 * p, 2)}, {vr(d + 8 + 2 * p, 2)}")
            for p in range(4):
                a(f"v_pk_add_f32 {vr(T + 2 * p, 2)}, {vr(T + 2 * p, 2)}, {vr(VONE, 2)}")
        else:
            for p in range(8):
                a(f"v_mul_f32 v{T + 8 + p}, v{d + p}, v{d + 8 + p}")
            for p in range(8):
                a(f"v_add_f32 v{T + p}, 1.0, v{T + p}")
        for p in range(8):
            a(f"v_rcp_f32 v{T + p}, v{T + p}")
        a("s_nop 0")
        if packed:
            for p in range(4):
                a(f"v_pk_mul_f32 {vr(T + 2 * p, 2)}, {vr(T + 2 * p, 2)}, {vr(T + 8 + 2 * p, 2)}")
        else:
            for p in range(8):
                a(f"v_mul_f32 v{T + p}, v{T + p}, v{T + 8 + p}")
        for p in range(4):
            a(f"v_cvt_pk_bf16_f32 v{o + p}, v{T + 2 * p}, v{T + 2 * p + 1}")

    tiles = [(j, r) for j in range(2) for r in range(2)]
    a("s_cmp_eq_u32 s62, 1")
    a("s_cbranch_scc1 P2_GELY")
    a("s_setprio 0")
    xb = OPT.get("xb", 2)
    for n, (j, r) in enumerate(tiles):
        epi_ffn(AC2 + (j * 2 + r) * 16, r, j, n > xb)
        if n == xb:
            a("s_barrier")
    if OPT.get("xstore", 0):
        for j, r in tiles:
            a(f"buffer_store_dwordx4 {vr(HP + (r * 2 + j) * 4, 4)}, v9, {WS}, s{40 + 2 * r} offen offset:{j * 1024} sc1")
    a("s_branch P1_DONE")
    a.label("P2_GELY")
    yb = OPT.get("yb", 0)
    if yb < 0:
        a("s_barrier")
    for n, (j, r) in enumerate(tiles):
        epi_ffn(AC2 + (j * 2 + r) * 16, r, j, True)
        if n == yb:
            a("s_barrier")
    a("s_branch P1_DONE")
    a.label("P2_IDLE")
    for n in range(4):
        qkv_store(n)
    hooks(OPT.get("fb", 6))
    a("s_waitcnt lgkmcnt(0)")
    a("s_cmp_lt_u32 s26, 2")
    a("s_cbranch_scc1 P2_GATE")
    srd(a, 32, 16, WD_BYTES)
    srd(a, 44, 8, WO_BYTES)
    a(f"""
    s_lshl_b32 s3, s56, 1
    s_and_b32 s61, s57, 1
    s_add_u32 s3, s3, s61
    s_mul_i32 s3, s3, 6
    s_add_u32 s3, s3, s26
    s_sub_u32 s3, s3, 2
    v_lshlrev_b32 v3, 7, v1
    s_mul_i32 s61, s3, {66 * 128}
    s_mul_i32 s3, s3, {17 * 128}
    buffer_load_dword v4, v3, s[32:35], s61 offen
    s_mov_b64 exec, 0x1ffff
    buffer_load_dword v5, v3, s[44:47], s3 offen
    s_add_u32 s61, s61, {64 * 128}
    s_mov_b64 exec, 3
    buffer_load_dword v6, v3, s[32:35], s61 offen
    s_mov_b64 exec, -1
    s_branch P2_IDLE2
    """)
    a.label("P2_GATE")
    srd(a, 32, 18, GW_BYTES)
    a(f"""
    v_lshrrev_b32 v3, 5, v1
    v_lshlrev_b32 v3, 4, v3
    s_and_b32 s3, s57, 1
    s_lshl_b32 s61, s3, 13
    s_lshl_b32 s44, s26, 12
    s_sub_u32 s61, s61, s44
    s_lshl_b32 s65, s56, 1
    s_add_u32 s65, s65, s3
    """)
    for i in range(8):
        a(f"v_add_u32 v{VXR + i}, s61, v{VXR + i}")
    GA = 24
    a("""
CHUNKORDER
    """)
    for half in range(2):
        for kk in range(14):
            k = half * 14 + kk
            if k % 4 == 0:
                a(f"s_bfe_u32 s37, s68, {0x40000 + k:#x}")
                a("s_lshl_b32 s37, s37, 7")
            a(f"buffer_load_dwordx4 {vr(AC2 + 4 * kk, 4)}, v3, s[32:35], s37 offen offset:{(k % 4) * 32}")
        a("s_waitcnt vmcnt(0)")
        for kk in range(14):
            k = half * 14 + kk
            reg, off = xaddr(k // 4, k % 4)
            a(f"ds_read_b128 {vr(WF + (k % 2) * 4, 4)}, v{reg} offset:{off}")
            a("s_waitcnt lgkmcnt(0)")
            mfma(a, GA, AC2 + 4 * kk, WF + (k % 2) * 4, None if k == 0 else GA)
    a(f"""
    s_lshl_b32 s44, s65, 8
    s_lshl_b32 s3, s26, 7
    s_add_u32 s44, s44, s3
    s_add_u32 s44, s44, {WS_G}
    s_mul_i32 s42, s65, {FS}
    s_lshl_b32 s3, s26, 3
    s_add_u32 s42, s42, s3
    s_add_u32 s42, s42, {WS_FG}
    v_lshlrev_b32 v3, 2, v1
    s_nop 7
    v_mul_f32 v5, {f2u(-math.log2(math.e)):#x}, v{GA}
    v_exp_f32 v5, v5
    s_nop 0
    v_add_f32 v5, 1.0, v5
    v_rcp_f32 v5, v5
    s_mov_b64 exec, 0xffffffff
    s_nop 0
    buffer_store_dword v5, v3, {WS}, s44 offen sc1
    s_mov_b64 exec, -1
    """)
    a("s_waitcnt vmcnt(0)")
    flag_store(a, [42])
    a.label("P2_IDLE2")
    for j in P2_BARS[1:]:
        a("s_barrier")
    a.label("P1_DONE")
    a.vreset()
    stamp(a, 7)


def gen_attention(a):
    VCUR, VNEXT, VBASE = 2, 3, 4
    Q, K, V, S, P, O, T = 10, 18, 34, 66, 98, 106, 122
    VG = 140
    a(f"""
    s_lshr_b32 s60, s48, 4
    s_lshl_b32 s3, s27, 1
    s_add_u32 s60, s60, s3
    s_and_b32 s61, s48, 15
    s_lshl_b32 s61, s61, 2
    s_add_u32 s61, s61, s49
    s_lshl_b32 s38, s60, 18
    s_add_u32 s38, s38, {WS_KV}
    s_lshl_b32 s41, s61, 7
    s_add_u32 s41, s41, {WS_G}
    v_and_b32 v6, 31, v1
    v_lshlrev_b32 v6, 2, v6
    s_lshl_b32 s3, s49, 14
    s_add_u32 s3, s3, {RING + 14336}
    v_add_u32 v5, s3, v9
    s_lshl_b32 s43, s62, 12
    v_add_u32 v{VBASE}, s43, v9
    v_mov_b32 v{VCUR}, v{VBASE}
    v_add_u32 v{VNEXT}, 32768, v{VBASE}
    s_mov_b32 s46, 32768
    s_mov_b32 s47, 8
    s_movk_i32 s63, 0x184
    s_cmp_eq_u32 s58, 1
    s_cselect_b32 s63, 4, s63
    """)
    for r in range(16):
        a(f"v_mov_b32 v{O + r}, 0")
    make_tag(a, 7, 8)
    stamp(a, 8)
    a(f"""
    s_barrier
    ds_read_b128 {vr(Q, 4)}, v5
    ds_read_b128 {vr(Q + 4, 4)}, v5 offset:1024
    ds_read_b128 {vr(V + 24, 4)}, v9
    ds_read_b128 {vr(V + 28, 4)}, v9 offset:1024
    """)
    for t in range(2):
        for j in range(2):
            a(f"ds_read_b128 {vr(K + t * 8 + j * 4, 4)}, v{VCUR} offset:{t * 8192 + j * 1024}")
        for j in range(2):
            a(f"ds_read_b128 {vr(V + t * 8 + j * 4, 4)}, v{VCUR} offset:{t * 8192 + 2048 + j * 1024}")
    a("s_waitcnt lgkmcnt(0)" if DIAG else "s_waitcnt lgkmcnt(8)")
    mfma(a, S + 16, V + 24, Q, None)
    mfma(a, S + 16, V + 28, Q + 4, S + 16)
    a("s_nop 15")

    def rowmax(src, dst):
        a(f"v_max3_f32 v{dst}, v{src}, v{src + 1}, v{src + 2}")
        for r in range(3, 15, 2):
            a(f"v_max3_f32 v{dst}, v{dst}, v{src + r}, v{src + r + 1}")
        a(f"v_max_f32 v{dst}, v{dst}, v{src + 15}")

    def crossmax(dst, tmp):
        a(f"v_mov_b32 v{tmp}, v{dst}")
        a("s_nop 1")
        a(f"v_permlane32_swap_b32 v{dst}, v{tmp}")
        a("s_nop 1")
        a(f"v_max_f32 v{dst}, v{dst}, v{tmp}")

    rowmax(S + 16, T)
    crossmax(T, T + 1)
    a(f"""
    v_mov_b32 v{T + 1}, 0
    v_cvt_pk_bf16_f32 v{T}, -v{T}, v{T + 1}
    v_cndmask_b32 v{Q + 6}, v{Q + 6}, v{T}, s[52:53]
    s_waitcnt lgkmcnt(0)
    s_nop 0
    """)
    mfma(a, S, K, Q, None)
    mfma(a, S, K + 4, Q + 4, S)
    for i in range(4):
        a(f"v_mov_b32 v{P + 4 + i}, 0")
        a(f"v_mov_b32 v{V + 28 + i}, 0")
    a("s_nop 7")
    PRIO = {2: 3, 3: 2, 0: 1, 1: 0} if not OPT.get("lad2") else {2: 2, 3: 1, 0: 1, 1: 0}
    stamp(a, 9)
    stamp2(a, 8)
    a.raw(".p2align 6")
    if OPT.get("shift"):
        a("s_nop 0")
    a.label("A_LOOP")
    for it, u in [(it, u) for it in range(8 if (DIAG and OPT.get('unroll')) else 1) for u in range(4)]:
        sc = S + (u % 2) * 16
        sn = S + ((u + 1) % 2) * 16
        kn = K + ((u + 1) % 2) * 8
        a("s_waitcnt lgkmcnt(0)")
        if u == 2:
            a("s_barrier")
            if it in (0, 3, 7) and OPT.get("unroll"):
                stamp(a, {0: 10, 3: 11, 7: 12}[it])
        a(f"s_setprio {PRIO[u]}")
        va = VCUR if u < 2 else VNEXT
        off = ((u + 2) % 4) * 8192
        pu = (u - 1) % 4

        def e(*idx):
            for i in idx:
                a(f"v_exp_f32 v{sc + i}, v{sc + i}")

        def c(i):
            a(f"v_cvt_pk_bf16_f32 v{P + i}, v{sc + 2 * i}, v{sc + 2 * i + 1}")

        e(0, 1)
        mfma(a, O, V + pu * 8 + 4, P + 4, O)
        for j in range(2):
            a(f"ds_read_b128 {vr(K + (u % 2) * 8 + j * 4, 4)}, v{va} offset:{off + j * 1024}")
        e(2, 3)
        c(0)
        e(4, 5)
        c(1)
        mfma(a, sn, kn, Q, None)
        for j in range(2):
            a(f"ds_read_b128 {vr(V + ((u + 2) % 4) * 8 + j * 4, 4)}, v{va} offset:{off + 2048 + j * 1024}")
        e(6, 7)
        c(2)
        e(8)
        c(3)
        e(9)
        mfma(a, sn, kn + 4, Q + 4, sn)
        if u in (1, 3):
            a(f"s_bitcmp1_b32 s63, s47")
            a(f"s_cbranch_scc1 A_RARE{u}")
            a.label(f"A_BACK{u}")
        e(10, 11)
        c(4)
        e(12, 13)
        c(5)
        mfma(a, O, V + u * 8, P, O)
        e(14, 15)
        c(6)
        c(7)
        if u == 3:
            a(f"v_mov_b32 v{VCUR}, v{VNEXT}")
            a("s_add_u32 s46, s46, 32768")
            a("s_cmp_eq_u32 s46, 98304")
            a("s_cselect_b32 s46, 0, s46")
            a(f"v_add_u32 v{VNEXT}, s46, v{VBASE}")
            a("s_sub_u32 s47, s47, 1")
            a("s_cmp_lg_u32 s47, 0")
    a("s_cbranch_scc1 A_LOOP")
    mfma(a, O, V + 28, P + 4, O)
    stamp(a, 13)
    stamp2(a, 10)
    a(f"""
    s_lshl_b32 s43, s49, 12
    s_add_u32 s43, s43, 32768
    v_add_u32 v5, s43, v9
    s_waitcnt lgkmcnt(0)
    s_nop 11
    s_cmp_eq_u32 s62, 0
    s_cbranch_scc1 A_FIN
    """)
    for q in range(4):
        a(f"ds_write_b128 v5, {vr(O + 4 * q, 4)} offset:{q * 1024}")
    a("s_waitcnt lgkmcnt(0)")
    a("s_barrier")
    stamp_flush(a)
    a("s_endpgm")
    a.label("A_FIN")
    a("s_barrier")
    stamp(a, 10)
    for q in range(4):
        a(f"ds_read_b128 {vr(S + 4 * q, 4)}, v5 offset:{q * 1024}")
    a("s_waitcnt lgkmcnt(0)")
    for p in (7, 0, 1, 2, 3, 4, 5, 6, 8, 9, 10, 11, 12, 13, 14):
        a(f"v_add_f32 v{O + p}, v{O + p}, v{S + p}")

    def get_l():
        a(f"v_mov_b32 v{T}, v{O + 7}")
        a(f"v_mov_b32 v{T + 1}, v{O + 7}")
        a(f"v_mov_b32 v{O + 7}, 0")
        a(f"v_mov_b32 v{O + 15}, 0")
        a(f"v_permlane32_swap_b32 v{T + 1}, v{T}")

    get_l()
    for c4 in range(4):
        a(f"v_mul_f32 v{T + 2 + c4}, 0, v{O + c4}")
    for p in range(4, 16):
        if p not in (7, 15):
            a(f"v_fmac_f32 v{T + 2 + p % 4}, 0, v{O + p}")
    a(f"""
    v_add_f32 v{T + 2}, v{T + 2}, v{T + 3}
    v_add_f32 v{T + 4}, v{T + 4}, v{T + 5}
    v_add_f32 v{T + 2}, v{T + 2}, v{T + 4}
    s_mov_b32 s44, {f2u(2.0 ** -30):#x}
    s_mov_b32 s45, {f2u(2.0 ** 60):#x}
    v_cmp_eq_f32 s[64:65], 0, v{T + 2}
    v_cmp_le_f32 s[66:67], s44, v{T + 1}
    v_cmp_ge_f32 vcc, s45, v{T + 1}
    s_and_b64 s[64:65], s[64:65], s[66:67]
    s_and_b64 s[64:65], s[64:65], vcc
    s_cmp_eq_u64 s[64:65], -1
    s_cbranch_scc0 A_FALL
    """)
    a.label("A_NORM")
    stamp(a, 11)
    a(f"""
    v_rcp_f32 v{T + 2}, v{T + 1}
    s_lshl_b32 s43, s61, 4
    s_add_u32 s43, s43, s60
    s_lshl_b32 s44, s43, 11
    s_add_u32 s44, s44, {WS_O}
    s_waitcnt vmcnt(0)
    v_mul_f32 v{T + 2}, v{T + 2}, v{VG}
    """)
    for p in range(16):
        if p not in (7, 15):
            a(f"v_mul_f32 v{O + p}, v{O + p}, v{T + 2}")
    for p in range(8):
        a(f"v_cvt_pk_bf16_f32 v{P + p}, v{O + 2 * p}, v{O + 2 * p + 1}")
    stamp(a, 12)
    a(f"v_or_b32 v{P + 3}, v{P + 3}, v7")
    a(f"v_or_b32 v{P + 7}, v{P + 7}, v7")
    a(f"buffer_store_dwordx4 {vr(P, 4)}, v9, {WS}, s44 offen sc1")
    a(f"buffer_store_dwordx4 {vr(P + 4, 4)}, v9, {WS}, s44 offen offset:1024 sc1")
    stamp_flush(a)
    a("s_endpgm")
    xs = OPT.get("xstore", 0)
    for u in (1, 3):
        a.label(f"A_RARE{u}")
        n1, n2 = a.newlabel("AR"), a.newlabel("AR")
        a("s_cmp_lg_u32 s47, 8")
        a(f"s_cbranch_scc1 {n1}")
        if xs:
            a("s_cmp_eq_u32 s62, 0")
            a(f"s_cbranch_scc1 A_BACK{u}")
        for j in range(2):
            a(f"buffer_store_dwordx4 {vr(HP + (u // 2 * 2 + j) * 4, 4)}, v9, {WS}, s{40 + 2 * (u // 2)} offen offset:{j * 1024} sc1")
        a(f"s_branch A_BACK{u}")
        a.label(n1)
        if u == OPT.get("hfu", 1):
            a("s_cmp_lg_u32 s47, 7")
            a(f"s_cbranch_scc1 {n2}")
            a("s_waitcnt vmcnt(0)")
            flag_store(a, [59])
            a(f"s_branch A_BACK{u}")
            a.label(n2)
        if u == 3:
            a("s_cmp_lg_u32 s47, 2")
            a(f"s_cbranch_scc1 A_BACK{u}")
            a(f"buffer_load_dword v{VG}, v6, {WS}, s41 offen sc1")
        a(f"s_branch A_BACK{u}")
    a.label("A_FALL")
    a(f"""
    v_cndmask_b32 v{Q + 6}, v{Q + 6}, 0, s[52:53]
    v_mov_b32 v{T + 6}, 0xff800000
    s_mov_b32 s44, s38
    s_mov_b32 s47, 64
    """)
    a.label("A_FL1")
    a(f"buffer_load_dwordx4 {vr(K, 4)}, v9, {WS}, s44 offen sc1")
    a(f"buffer_load_dwordx4 {vr(K + 4, 4)}, v9, {WS}, s44 offen offset:1024 sc1")
    a("s_waitcnt vmcnt(0)")
    mfma(a, S, K, Q, None)
    mfma(a, S, K + 4, Q + 4, S)
    a("s_nop 15")
    rowmax(S, T + 7)
    a(f"""
    v_max_f32 v{T + 6}, v{T + 6}, v{T + 7}
    s_add_u32 s44, s44, 4096
    s_sub_u32 s47, s47, 1
    s_cmp_lg_u32 s47, 0
    s_cbranch_scc1 A_FL1
    """)
    crossmax(T + 6, T + 7)
    for r in range(16):
        a(f"v_mov_b32 v{O + r}, 0")
    a("s_mov_b32 s44, s38")
    a("s_mov_b32 s47, 64")
    a.label("A_FL2")
    a(f"buffer_load_dwordx4 {vr(K, 4)}, v9, {WS}, s44 offen sc1")
    a(f"buffer_load_dwordx4 {vr(K + 4, 4)}, v9, {WS}, s44 offen offset:1024 sc1")
    a(f"buffer_load_dwordx4 {vr(V, 4)}, v9, {WS}, s44 offen offset:2048 sc1")
    a(f"buffer_load_dwordx4 {vr(V + 4, 4)}, v9, {WS}, s44 offen offset:3072 sc1")
    a("s_waitcnt vmcnt(0)")
    mfma(a, S, K, Q, None)
    mfma(a, S, K + 4, Q + 4, S)
    a("s_nop 15")
    for r in range(16):
        a(f"v_sub_f32 v{S + r}, v{S + r}, v{T + 6}")
    for r in range(16):
        a(f"v_exp_f32 v{S + r}, v{S + r}")
    a("s_nop 0")
    for p in range(8):
        a(f"v_cvt_pk_bf16_f32 v{P + p}, v{S + 2 * p}, v{S + 2 * p + 1}")
    a("s_nop 1")
    mfma(a, O, V, P, O)
    mfma(a, O, V + 4, P + 4, O)
    a("""
    s_add_u32 s44, s44, 4096
    s_sub_u32 s47, s47, 1
    s_cmp_lg_u32 s47, 0
    s_cbranch_scc1 A_FL2
    s_nop 15
    """)
    get_l()
    a("s_branch A_NORM")


def gen_aux(a):
    a.label("L_AUX")
    VXE, VXO, VC, VF = 10, 11, 12, 13
    a(f"""
    s_setprio 3
    s_sub_u32 s49, s26, 8
    s_lshl_b32 s3, s56, 7
    s_lshl_b32 s66, s49, 5
    s_add_u32 s3, s3, s66
    v_lshrrev_b32 v2, 3, v1
    v_and_b32 v3, 7, v1
    v_lshrrev_b32 v4, 4, v1
    v_add_u32 v5, s3, v2
    v_mul_u32_u24 v5, 896, v5
    v_xor_b32 v6, v3, v4
    v_lshl_add_u32 v{VXE}, v6, 4, v5
    v_xor_b32 v6, 4, v6
    v_lshl_add_u32 v{VXO}, v6, 4, v5
    v_add_u32 v{VXO}, {8 * 896 - 1024}, v{VXO}
    s_lshl_b32 s3, s49, 4
    v_lshrrev_b32 v4, 2, v1
    v_add_u32 v4, s3, v4
    v_mul_u32_u24 v4, 2688, v4
    v_and_b32 v5, 3, v1
    v_lshl_add_u32 v4, v5, 4, v4
    s_mul_i32 s65, s59, 56
    v_add_u32 v{VC}, s65, v4
    s_lshl_b32 s62, s49, 12
    s_lshl_b32 s63, s49, 10
    s_add_u32 s63, s63, {FB}
CHUNKORDER
    s_waitcnt lgkmcnt(0)
    """)
    srd(a, 32, 4, X_BYTES)
    srd(a, 44, 6, WQKV_BYTES)

    def dma1(c):
        tag = f"c{c}"
        a(f"s_bfe_u32 s37, s68, {0x40000 + 4 * c:#x}")
        a(f"s_mul_i32 s36, s37, {64 * 2688}")
        for j in range(3):
            a(f"s_add_u32 m0, s63, {(c % 3) * BLK + j * 4096}")
            a(f"s_add_u32 s3, s36, {j * 56}")
            a.vmem(f"buffer_load_dwordx4 v{VC}, s[44:47], s3 offen lds", tag)
        a(f"s_add_u32 m0, s62, {c * BLK}")
        a("s_lshl_b32 s3, s37, 7")
        for i in range(4):
            if i == 2:
                a("s_add_u32 s3, s3, 12288")
            a.vmem(f"buffer_load_dwordx4 v{VXO if i % 2 else VXE}, s[32:35], s3 offen offset:{i * 1024} lds", tag)

    stamp(a, 12)
    dma1(0)
    stamp(a, 13)
    dma1(1)
    a(f"""
    v_mul_u32_u24 v4, 3584, v2
    v_lshrrev_b32 v5, 1, v3
    v_and_b32 v6, 2, v2
    v_xor_b32 v5, v5, v6
    s_lshr_b32 s3, s49, 1
    v_xor_b32 v5, s3, v5
    v_lshl_add_u32 v4, v5, 5, v4
    v_and_b32 v7, 1, v3
    v_lshl_add_u32 v4, v7, 4, v4
    s_lshl_b32 s64, s57, 1
    s_and_b32 s65, s49, 1
    s_add_u32 s64, s64, s65
    s_lshl_b32 s64, s64, 7
    v_add_u32 v{VF}, s64, v4
    s_cmp_ge_u32 s49, 2
    s_cselect_b64 s[12:13], s[14:15], s[12:13]
    s_cmp_eq_u32 s58, 1
    s_cselect_b32 s66, 0, {WG_BYTES}
    """)
    srd(a, 40, 12, "s66")
    srd(a, 28, 24, WS_SIZE)

    def dma2(j):
        a(f"s_add_u32 m0, s62, {W_BLK[j] * BLK}")
        a(f"s_bfe_u32 s37, s68, {0x40000 + 4 * (j // 2):#x}")
        a(f"s_mul_i32 s3, s37, {64 * 3584}")
        if j % 2:
            a(f"s_add_u32 s3, s3, {32 * 3584}")
        for i in range(4):
            if i:
                a(f"s_add_u32 s3, s3, {8 * 3584 - 1024}")
            a.vmem(f"buffer_load_dwordx4 v{VF}, s[40:43], s3 offen offset:{i * 1024} lds", f"f{j}")

    def issue2(b):
        for j in range(14):
            if W_ISSUE[j] == b:
                dma2(j)

    for c in range(7):
        stamp(a, 3 + c, grp=3)
        a.vwait(f"c{c}")
        a("s_barrier")
        if c + 2 <= 6:
            dma1(c + 2)
        issue2(c - 7)
    a(f"""
    s_lshr_b32 s60, s48, 4
    s_lshl_b32 s3, s27, 1
    s_add_u32 s60, s60, s3
    s_lshl_b32 s38, s60, 18
    s_add_u32 s38, s38, {WS_KV}
    s_lshl_b32 s39, s49, 13
    v_add_u32 v8, s39, v9
    v_mov_b32 v2, 0
    s_and_b32 s59, s48, 15
    s_lshl_b32 s59, s59, 2
    s_add_u32 s59, s59, s49
    s_lshl_b32 s61, s60, 2
    s_add_u32 s61, s61, s49
    s_mul_i32 s61, s61, {FS}
    s_add_u32 s61, s61, {WS_FKV}
    v_lshlrev_b32 v3, 3, v1
    v_add_u32 v3, s61, v3
    s_mul_i32 s61, s60, {FS}
    s_lshr_b32 s58, s59, 1
    s_lshl_b32 s3, s59, 3
    s_add_u32 s61, s61, s3
    s_add_u32 s61, s61, {WS_FQ}
    v_mov_b32 v4, s61
    v_cmp_gt_u32 vcc, 32, v1
    s_mul_i32 s58, s58, {FS}
    s_lshl_b32 s54, s60, 6
    v_cndmask_b32 v15, v4, v3, vcc
    s_add_u32 s54, s54, s59
    s_lshl_b32 s54, s54, 11
    s_add_u32 s54, s54, {WS_Q}
    s_lshl_b32 s55, s49, 14
    s_add_u32 s55, s55, {RING + 14336}
    s_mov_b32 s67, 0
    """)
    VKV = 8

    def kv(i):
        st = (i % 3) * 32768
        for half in range(2):
            a(f"s_add_u32 m0, s39, {st + half * 4096}")
            a(f"s_add_u32 s3, s38, {i * 32768 + half * 4096}")
            for j in range(4):
                a.vmem(f"buffer_load_dwordx4 v{VKV}, {WS}, s3 offen offset:{j * 1024} sc1 lds", f"kv{i}")

    def load_q():
        a("s_mov_b32 m0, s55")
        a("s_nop 0")
        a.vmem(f"buffer_load_dwordx4 v9, {WS}, s54 offen sc1 lds", "q")
        a.vmem(f"buffer_load_dwordx4 v9, {WS}, s54 offen offset:1024 sc1 lds", "q")

    for n, b in enumerate(P2_BARS):
        if b < 14:
            a.vwait(*[f"f{j}" for j in range(b, P2_BARS[n + 1])])
        if 1 <= b <= 12:
            stamp(a, 1 + b, grp=1)
        a("s_barrier")
        issue2(b)
        if b == 0:
            a.vmem(f"global_load_dwordx2 {vr(NONCE_V, 2)}, v2, s[22:23] sc1", "f2")
        if b == 10:
            nonce_check(a, 2)
            sk = a.newlabel("TRY")
            a(f"buffer_load_dwordx2 {vr(16, 2)}, v15, {WS}, s52 offen sc1")
            a(f"v_readfirstlane_b32 s50, v{NONCE_V}")
            a(f"v_readfirstlane_b32 s51, v{NONCE_V + 1}")
            a("s_waitcnt vmcnt(0)")
            a(f"v_cmp_eq_u64 vcc, s[50:51], {vr(16, 2)}")
            a("s_nop 1")
            a("s_cmp_eq_u64 vcc, -1")
            a(f"s_cbranch_scc0 {sk}")
            a("s_mov_b32 s67, 1")
            kv(0)
            a.label(sk)
            a.vreset()
    stamp(a, 2)
    a("s_cmp_eq_u32 s67, 1")
    a("s_cbranch_scc1 L_KV0D")
    poll(a, 15, 52, 16)
    kv(0)
    a.label("L_KV0D")
    a.vreset()
    stamp(a, 3)
    load_q()
    kv(1)
    a("s_cmp_ge_u32 s48, 28")
    a("s_cbranch_scc1 L_LOADER")
    vm_at_split = list(a.vm)

    VW, VTR, VOWN, VRD, VTO, VO = 10, 11, 13, 14, 160, 162
    ACC, H, WF, VG = 16, 80, 144, 166
    a(f"""
    s_mul_i32 s56, s48, 37
    s_lshr_b32 s56, s56, 8
    s_mul_i32 s57, s56, 7
    s_sub_u32 s57, s48, s57
    s_lshl_b32 s3, s27, 2
    s_add_u32 s56, s56, s3
    s_lshl_b32 s46, s49, 14
    s_add_u32 s46, s46, {RING}
    s_mul_i32 s47, s56, {2 * 112}
    s_mul_i32 s3, s49, 28
    s_add_u32 s47, s47, s3
    s_lshl_b32 s47, s47, 10
    s_add_u32 s47, s47, {WS_H}
    s_mul_i32 s44, s49, {448 * 896}
    s_mul_i32 s45, s49, {112 * 896}
    s_add_u32 s62, s49, 4
    s_sub_u32 s3, s49, 2
    s_cmp_lt_u32 s49, 2
    s_cselect_b32 s62, s62, s3
    s_lshl_b32 s62, s62, 14
    """)
    a(f"""
    v_lshrrev_b32 v3, 3, v1
    v_bfe_u32 v4, v1, 1, 2
    v_and_b32 v5, 2, v3
    v_xor_b32 v4, v4, v5
    v_and_b32 v5, 1, v1
    v_mul_u32_u24 v6, 896, v3
    v_lshl_add_u32 v6, v4, 5, v6
    v_lshl_add_u32 v6, v5, 4, v6
    s_lshl_b32 s3, s57, 7
    v_add_u32 v{VW}, s3, v6
    v_lshrrev_b32 v3, 5, v1
    v_bfe_u32 v4, v1, 4, 1
    v_bfe_u32 v5, v1, 2, 2
    v_and_b32 v6, 3, v1
    v_lshl_add_u32 v7, v3, 2, v5
    v_lshlrev_b32 v7, 7, v7
    v_lshl_add_u32 v7, v6, 3, v7
    v_and_b32 v5, 2, v5
    v_xor_b32 v5, v5, v4
    v_lshl_add_u32 v6, v5, 5, v7
    v_add_u32 v{VTR}, s46, v6
    v_xor_b32 v5, 2, v5
    v_lshl_add_u32 v6, v5, 5, v7
    v_add_u32 v{VTR + 1}, s46, v6
    v_add_u32 v{VOWN}, s46, v9
    s_lshl_b32 s3, s49, 12
    s_add_u32 s3, s3, {RING}
    v_add_u32 v{VRD}, s3, v9
    """)
    srd(a, 32, 16, WD_BYTES)

    def load_w(k):
        a(f"s_add_u32 m0, s46, {(k % 8) * 2048}")
        a(f"s_add_u32 s3, s44, {k * 16 * 896}")
        a.vmem(f"buffer_load_dwordx4 v{VW}, s[32:35], s3 offen lds", f"w{k}")
        a(f"s_add_u32 s3, s44, {k * 16 * 896 + 6144}")
        a.vmem(f"buffer_load_dwordx4 v{VW}, s[32:35], s3 offen offset:1024 lds", f"w{k}")

    def load_h(k, r):
        a(f"s_add_u32 s3, s47, {k * 1024 + r * 112 * 1024}")
        a.vmem(f"buffer_load_dwordx4 {vr(H + ((k % 8) * 2 + r) * 4, 4)}, v9, {WS}, s3 offen sc1", f"h{k}")

    a(f"""
    s_mul_i32 s3, s56, {FS}
    v_mov_b32 v3, s58
    v_mov_b32 v4, s3
    v_cmp_gt_u32 vcc, 4, v1
    v_and_b32 v5, 1, v1
    s_mov_b32 s61, {WS_FG}
    v_cndmask_b32 v3, v4, v3, vcc
    v_lshl_add_u32 v3, v5, 3, v3
    v_add_u32 v163, s61, v3
    """)
    a(f"""
    v_and_b32 v15, 15, v1
    v_min_u32 v15, 13, v15
    v_lshlrev_b32 v15, 3, v15
    s_lshl_b32 s61, s56, 2
    s_add_u32 s61, s61, s49
    s_mul_i32 s61, s61, {FS}
    s_add_u32 s61, s61, {WS_FH}
    v_add_u32 v15, s61, v15
    v_cmp_gt_u32 vcc, 16, v1
    s_nop 1
    v_cndmask_b32 v15, v15, v163, vcc
    v_and_b32 v3, 31, v1
    v_lshlrev_b32 v3, 2, v3
    """)
    kv(2)
    a.vwait("q")
    a(f"s_setprio {OPT.get('gprio', 0)}")
    a("s_barrier")
    stamp(a, 4)
    for k in range(7):
        load_w(k)

    def trd(k):
        b = WF + (k % 2) * 8
        o = (k % 8) * 2048
        for ct in range(2):
            a(f"ds_read_b64_tr_b16 {vr(b + ct * 4, 2)}, v{VTR + ct} offset:{o}")
            a(f"ds_read_b64_tr_b16 {vr(b + ct * 4 + 2, 2)}, v{VTR + ct} offset:{o + 1024}")

    def step(k):
        a.vwait(f"h{k}", f"w{k + 1}")
        a("s_waitcnt lgkmcnt(0)")
        if k + 1 < 28:
            trd(k + 1)
        n = 0
        for r in range(2):
            for ct in range(2):
                d = ACC + (r * 2 + ct) * 16
                mfma(a, d, WF + (k % 2) * 8 + ct * 4, H + ((k % 8) * 2 + r) * 4, None if k == 0 else d)
                if k + 8 < 28:
                    if n == 0:
                        load_w(k + 8)
                    if n == 1:
                        load_h(k + 8, 0)
                    if n == 3:
                        load_h(k + 8, 1)
                n += 1

    spi = OPT.get("spi", 4)
    hs = OPT.get("hs", 3)
    plan = [0] * (hs + 1) + [spi] * (7 - hs) + [OPT.get("spl", 4)]
    k = 0
    for i in range(9):
        if i >= 1 and i + 2 <= 7:
            kv(i + 2)
        if i == 1:
            load_w(7)
        if i == hs:
            poll(a, 15, 52, WF)
            stamp(a, 5)
            for kk in range(8):
                load_h(kk, 0)
                load_h(kk, 1)
            a(f"""
            s_lshl_b32 s3, s56, 8
            s_add_u32 s3, s3, {WS_G}
            """)
            a.vmem(f"buffer_load_dword v{VG}, v3, {WS}, s3 offen sc1", "g")
            a.vmem(f"buffer_load_dword v{VG + 1}, v3, {WS}, s3 offen offset:128 sc1", "g")
            trd(0)
        if i == 7:
            srd(a, 40, 8, WO_BYTES)
            for g4 in range(4):
                a(f"s_add_u32 m0, s62, {g4 * 4096}")
                for j in range(4):
                    if g4 == 3 and j == 3:
                        continue
                    a(f"s_add_u32 s3, s45, {g4 * 32 * 896 + j * 6144}")
                    a.vmem(f"buffer_load_dwordx4 v{VW}, s[40:43], s3 offen offset:{j * 1024} lds", "wo")
        for _ in range(plan[i]):
            if k < 28:
                step(k)
                k += 1
        a.vwait(f"kv{i + 1}")
        a("s_barrier")
        if i in (3, 7, 8):
            stamp(a, {3: 6, 7: 7, 8: 8}[i])
    a(f"s_setprio {OPT.get('tprio', 0)}")
    while k < 28:
        step(k)
        k += 1
    stamp(a, 9)
    a.vwait("g", "wo")
    a(f"""
    v_sub_f32 v2, 1.0, v{VG}
    v_sub_f32 v4, 1.0, v{VG + 1}
    v_mov_b32 v3, v2
    v_mov_b32 v5, v4
    s_lshl_b32 s47, s56, 6
    s_lshl_b32 s3, s49, 3
    s_add_u32 s47, s47, s3
    s_lshl_b32 s47, s47, 10
    s_add_u32 s64, s47, {WS_O}
    s_add_u32 s65, s64, 32768
    s_add_u32 s44, s64, 4096
    s_add_u32 s45, s65, 4096
    s_mov_b32 s66, 15
    s_mov_b32 s69, 0x40000
    """)
    for p in range(32):
        a(f"v_pk_mul_f32 {vr(ACC + 2 * p, 2)}, {vr(ACC + 2 * p, 2)}, {'v[2:3]' if p < 16 else 'v[4:5]'}")
    TA = [2, 3, 4, 5, 6, 7, 10, 11]
    VTAG = 12
    make_tag(a, VTAG, 15)
    a("""
    v_lshrrev_b32 v15, 5, v1
    v_bfe_u32 v160, v1, 2, 2
    v_bfe_u32 v161, v1, 4, 1
    v_and_b32 v163, 3, v1
    v_lshlrev_b32 v163, 3, v163
    v_add_u32 v163, s62, v163
    """)
    for pat, (s0, s1) in enumerate(((0, 4), (8, 11), (14, 18), (22, 25))):
        a(f"v_mul_u32_u24 v{WF}, {s1 - s0}, v15")
        a(f"v_add3_u32 v{WF}, v{WF}, v160, {s0}")
        a(f"v_and_b32 v{WF + 1}, 2, v{WF}")
        a(f"v_xor_b32 v{WF + 1}, v{WF + 1}, v161")
        a(f"v_lshl_add_u32 v{WF}, v{WF}, 7, v163")
        a(f"v_lshl_add_u32 v{TA[2 * pat]}, v{WF + 1}, 5, v{WF}")
        a(f"v_xor_b32 v{TA[2 * pat + 1]}, 64, v{TA[2 * pat]}")
    a.label("O_LOOP")
    for hd in range(4):
        sk = a.newlabel("OSK")
        a(f"s_bitcmp1_b32 s66, {hd}")
        a(f"s_cbranch_scc0 {sk}")
        for u in range(2):
            for r in range(2):
                k = hd * 2 + u
                sreg = (64 if k < 4 else 44) + r
                a(f"buffer_load_dwordx4 {vr(H + (k * 2 + r) * 4, 4)}, v9, {WS}, s{sreg} offen offset:{(k % 4) * 1024} sc1")
        a.label(sk)
    a("s_waitcnt vmcnt(0)")
    for hd in range(4):
        sk = a.newlabel("OSK")
        hb = H + hd * 16
        a(f"s_bitcmp1_b32 s66, {hd}")
        a(f"s_cbranch_scc0 {sk}")
        for u in range(2):
            for ct in range(2):
                for sec in range(2):
                    a(f"ds_read_b64_tr_b16 {vr(WF + u * 8 + ct * 4 + sec * 2, 2)}, v{TA[(u * 2 + sec) * 2 + ct]} offset:{hd * 3584}")
        for q in range(4):
            a(f"v_xor_b32 v{hb + 4 * q + 3}, v{hb + 4 * q + 3}, v{VTAG}")
        a(f"v_or3_b32 v15, v{hb + 3}, v{hb + 7}, v{hb + 11}")
        a(f"v_or_b32 v15, v15, v{hb + 15}")
        a("v_cmp_gt_u32 vcc, 0x10000, v15")
        a("s_waitcnt lgkmcnt(0)")
        a("s_cmp_eq_u64 vcc, -1")
        a(f"s_cbranch_scc0 {sk}")
        a(f"s_bitset0_b32 s66, {hd}")
        for u in range(2):
            for r in range(2):
                for ct in range(2):
                    d = ACC + (r * 2 + ct) * 16
                    mfma(a, d, WF + u * 8 + ct * 4, hb + (u * 2 + r) * 4, d)
        a.label(sk)
    a(f"""
    s_cmp_eq_u32 s66, 0
    s_cbranch_scc1 O_DONE
    s_sub_u32 s69, s69, 1
    s_cbranch_scc1 O_DONE
    s_sleep {OPT.get('osleep', 1)}
    s_branch O_LOOP
    """)
    a.label("O_DONE")
    a.vreset()
    stamp(a, 10)
    srd(a, 32, 20, X_BYTES)
    a(f"""
    v_and_b32 v2, 31, v1
    s_lshr_b32 s66, s49, 1
    s_and_b32 s67, s49, 1
    s_lshl_b32 s3, s56, 1
    s_add_u32 s3, s3, s66
    s_lshl_b32 s3, s3, 5
    v_add_u32 v2, s3, v2
    v_mul_u32_u24 v{VO}, 896, v2
    v_lshrrev_b32 v3, 5, v1
    v_lshl_add_u32 v{VO}, v3, 4, v{VO}
    s_lshl_b32 s63, s57, 7
    s_lshl_b32 s3, s67, 6
    s_add_u32 s63, s63, s3
    """)
    stamp(a, 11)
    for t in range(4):
        for q in range(4):
            a(f"ds_write_b128 v{VOWN}, {vr(ACC + t * 16 + q * 4, 4)} offset:{t * 4096 + q * 1024}")
    a("s_waitcnt lgkmcnt(0)")
    a("s_barrier")
    for w in range(4):
        for q in range(4):
            a(f"ds_read_b128 {vr(ACC + w * 16 + q * 4, 4)}, v{VRD} offset:{w * 16384 + q * 1024}")
        if w == 2:
            a("s_waitcnt lgkmcnt(4)")
            for p in range(8):
                a(f"v_pk_add_f32 {vr(H + 2 * p, 2)}, {vr(ACC + 2 * p, 2)}, {vr(ACC + 16 + 2 * p, 2)}")
    a("s_waitcnt lgkmcnt(0)")
    for p in range(8):
        a(f"v_pk_add_f32 {vr(ACC + 32 + 2 * p, 2)}, {vr(ACC + 32 + 2 * p, 2)}, {vr(ACC + 48 + 2 * p, 2)}")
    for p in range(8):
        a(f"v_pk_add_f32 {vr(H + 2 * p, 2)}, {vr(H + 2 * p, 2)}, {vr(ACC + 32 + 2 * p, 2)}")
    for p in range(8):
        a(f"v_cvt_pk_bf16_f32 v{ACC + p}, v{H + 2 * p}, v{H + 2 * p + 1}")
    a("s_nop 1")
    for pr in range(2):
        a(f"v_permlane32_swap_b32 v{ACC + 4 * pr}, v{ACC + 4 * pr + 2}")
        a(f"v_permlane32_swap_b32 v{ACC + 4 * pr + 1}, v{ACC + 4 * pr + 3}")
    for pr in range(2):
        a(f"buffer_store_dwordx4 {vr(ACC + 4 * pr, 4)}, v{VO}, s[32:35], s63 offen offset:{32 * pr}")
    stamp_flush(a)
    a("s_endpgm")

    a.label("L_LOADER")
    a.vm = list(vm_at_split)
    a(f"""
    v_and_b32 v3, 1, v1
    v_lshlrev_b32 v3, 3, v3
    s_add_u32 s61, s58, {WS_FG}
    """)
    kv(2)
    a.vwait("q")
    a("s_barrier")
    for i in range(7):
        if i >= 1 and i + 2 <= 7:
            kv(i + 2)
        if i == 2:
            poll(a, 3, 61, 16)
        a.vwait(f"kv{i + 1}")
        a("s_barrier")
    stamp_flush(a)
    a.label("L_END")
    a("s_endpgm")


def chunk_order():
    if OPT.get("first0", 1):
        n, seq, lead = 6, 0x654321654321, 1
    else:
        n, seq, lead = 7, 0x65432106543210, 0
    L = f"""
    s_lshr_b32 s68, s48, 3
    s_mul_i32 s68, s68, {OPT.get("rotc", 2)}
    s_and_b32 s3, s48, {OPT.get("rotm", 7)}
    s_add_u32 s68, s68, s3
    s_sub_u32 s3, s68, {n}
    s_cmp_ge_u32 s68, {n}
    s_cselect_b32 s68, s3, s68
    s_sub_u32 s3, s68, {n}
    s_cmp_ge_u32 s68, {n}
    s_cselect_b32 s68, s3, s68
    s_lshl_b32 s3, s68, 2
    s_mov_b32 s68, {seq & 0xffffffff:#x}
    s_mov_b32 s69, {seq >> 32:#x}
    s_lshr_b64 s[68:69], s[68:69], s3
    s_lshl_b32 s68, s68, {4 * lead}
    """
    return "".join("    " + l.strip() + "\n" for l in L.strip().split("\n"))


def main():
    global DIAG
    DIAG = os.environ.get("DIAG", "0") == "1"
    for kvp in os.environ.get("OPT", "").split(","):
        if kvp:
            k, _, v = kvp.partition("=")
            OPT[k] = int(v) if v else 1
    ref = open(f"cdna_kernels/{NAME}.s.ref").read().split("\n")
    head = [l for l in ref if l.startswith(";") and "@launch" not in l]
    a = Asm()
    for l in head:
        a.raw(l)
    a.raw("; @launch grid=(256,1,1) block=(768,1,1) lds=163840")
    a.raw('.amdgcn_target "amdgcn-amd-amdhsa--gfx950"')
    a.raw(".text")
    kn = NAME + "_kernel"
    a.raw(f".globl {kn}")
    a.raw(".p2align 8")
    a.raw(f".type {kn},@function")
    a.label(kn)
    gen_prologue(a)
    gen_p1_compute(a)
    gen_attention(a)
    gen_aux(a)
    a.raw('.section .rodata,"a"')
    out = a.text().replace("    CHUNKORDER\n", chunk_order()) + f""".p2align 6
.amdhsa_kernel {kn}
  .amdhsa_next_free_vgpr 168
  .amdhsa_next_free_sgpr 102
  .amdhsa_accum_offset 168
  .amdhsa_group_segment_fixed_size 0
  .amdhsa_kernarg_size 88
  .amdhsa_user_sgpr_count 2
  .amdhsa_user_sgpr_kernarg_segment_ptr 1
  .amdhsa_system_sgpr_workgroup_id_x 1
.end_amdhsa_kernel
"""
    path = sys.argv[1] if len(sys.argv) > 1 else f"cdna_kernels/{NAME}.s"
    open(path, "w").write(out)


if __name__ == "__main__":
    main()
```

```python
import math
import os
import struct
import sys

NAME = "gated_mix__mha_block__geglu_ffn__prompt"

WS_Q = 0
WS_KV = 2 << 20
WS_H = 6 << 20
WS_O = 14 << 20
WS_G = 20 << 20
WS_F = 21 << 20
FS = 4352
WS_FKV = WS_F
WS_FQ = WS_F + 64 * FS
WS_FG = WS_F + 80 * FS
WS_FH = WS_F + 112 * FS
WS_FO = WS_F + 240 * FS
WS_D = 23 << 20
WS_SIZE = 24 << 20

X_BYTES = 2048 * 448 * 2
WQKV_BYTES = 448 * 1344 * 2
WG_BYTES = 448 * 1792 * 2
WD_BYTES = 1792 * 448 * 2
WO_BYTES = 448 * 448 * 2
GW_BYTES = 448 * 2

BLK = 16384
FB = 7 * BLK
L_NONCE = 0
W_BLK = [8, 9, 7, 8, 9, 0, 7, 8, 1, 9, 2, 7, 8, 3]
W_ISSUE = [-2, -1, 0, 1, 2, 2, 3, 4, 4, 5, 6, 7, 8, 8]
P2_BARS = [0, 1, 2, 3, 4, 5, 6, 7, 8, 10, 14]
RING = 98304

DIAG = False
OPT = {}

WS = "s[28:31]"
NONCE_V = 164
HP = 144


def f2u(x):
    return struct.unpack("<I", struct.pack("<f", x))[0]


class Asm:
    def __init__(self):
        self.L = []
        self.vm = []
        self.nlab = 0

    def __call__(self, s):
        for line in s.strip("\n").split("\n"):
            if line.strip():
                self.L.append("    " + line.strip())

    def label(self, s):
        self.L.append(s + ":")

    def raw(self, s):
        self.L.append(s)

    def text(self):
        return "\n".join(self.L) + "\n"

    def newlabel(self, p):
        self.nlab += 1
        return f"{p}_{self.nlab}"

    def vmem(self, s, tag):
        self(s)
        self.vm.append(tag)

    def vwait(self, *tags):
        last = -1
        for i, t in enumerate(self.vm):
            if t in tags:
                last = i
        if last < 0:
            return
        n = len(self.vm) - 1 - last
        assert n <= 63
        self(f"s_waitcnt vmcnt({n})")
        self.vm = self.vm[last + 1:]

    def vreset(self):
        self.vm = []


def vr(b, n):
    return f"v[{b}:{b + n - 1}]"


def stamp(a, i, real=False, grp=0):
    if DIAG and (grp == OPT.get("grp", 0) or i in (0, 1, 14, 15)):
        a(f"{'s_memrealtime' if real else 's_memtime'} s[{70 + 2 * i}:{71 + 2 * i}]")


def stamp2(a, i):
    stamp(a, i, grp=5)
    stamp(a, i + 1, True, grp=5)


def stamp_flush(a):
    if not DIAG:
        return
    stamp(a, 14)
    stamp(a, 15, True)
    a("s_waitcnt lgkmcnt(0)")
    a("s_mov_b64 exec, 1")
    for i in range(16):
        a(f"v_mov_b32 v{16 + i}, s{70 + 2 * i}")
    a("s_lshl_b32 s68, s2, 4")
    a("s_add_u32 s68, s68, s26")
    a("s_lshl_b32 s68, s68, 6")
    a(f"s_add_u32 s68, s68, {WS_D}")
    for q in range(4):
        a(f"buffer_store_dwordx4 {vr(16 + 4 * q, 4)}, off, {WS}, s68 offset:{16 * q}")
    if OPT.get("dbg"):
        sk = a.newlabel("DBG")
        a("v_not_b32 v40, v17")
        a("v_mov_b32 v41, 0")
        a("global_atomic_umax v41, v40, s[22:23] offset:8")
        a("global_atomic_umax v41, v17, s[22:23] offset:12")
        a("global_atomic_umax v41, v31, s[22:23] offset:16")
        a("s_lshl_b32 s3, s2, 4")
        a("s_add_u32 s3, s3, s26")
        a(f"s_cmp_lg_u32 s3, {OPT['dbg'] * 16}")
        a(f"s_cbranch_scc1 {sk}")
        for n, i in enumerate((1, 3, 5, 7, 9, 11, 15)):
            a(f"global_store_dword v41, v{16 + i}, s[22:23] offset:{20 + 4 * n}")
        a("v_sub_u32 v42, v30, v16")
        a("global_store_dword v41, v42, s[22:23] offset:48")
        a.label(sk)


def srd(a, d, lo, nbytes):
    a(f"s_mov_b32 s{d}, s{lo}")
    a(f"s_and_b32 s{d + 1}, s{lo + 1}, 0xffff")
    a(f"s_mov_b32 s{d + 2}, {nbytes}")
    a(f"s_mov_b32 s{d + 3}, 0x20000")


def mfma(a, d, x, y, c):
    cs = "0" if c is None else vr(c, 16)
    a(f"v_mfma_f32_32x32x16_bf16 {vr(d, 16)}, {vr(x, 4)}, {vr(y, 4)}, {cs}")


def flag_store(a, sregs):
    a("s_mov_b64 exec, 1")
    for s in sregs:
        a.vmem(f"buffer_store_dwordx2 {vr(NONCE_V, 2)}, off, {WS}, s{s} sc1", "flag")
    a("s_mov_b64 exec, -1")


def make_tag(a, vdst, vtmp):
    a(f"""
    v_and_b32 v{vtmp}, 2, v1
    v_cmp_eq_u32 vcc, 0, v{vtmp}
    v_and_b32 v{vtmp}, 1, v1
    v_lshlrev_b32 v{vtmp}, 4, v{vtmp}
    v_cndmask_b32 v{vdst}, v{NONCE_V + 1}, v{NONCE_V}, vcc
    v_lshlrev_b32 v{vdst}, v{vtmp}, v{vdst}
    v_and_b32 v{vdst}, 0xffff0000, v{vdst}
    """)


def nonce_check(a, vzero):
    lp, dn = a.newlabel("NLOOP"), a.newlabel("NDONE")
    a("s_mov_b32 s69, 0x40000")
    a.label(lp)
    a(f"""
    v_cmp_ne_u32 vcc, 0, v{NONCE_V}
    s_sub_u32 s69, s69, 1
    s_cbranch_scc1 {dn}
    s_cbranch_vccnz {dn}
    global_load_dwordx2 {vr(NONCE_V, 2)}, v{vzero}, s[22:23] sc1
    s_waitcnt vmcnt(0)
    s_branch {lp}
    """)
    a.label(dn)


def poll(a, vaddr, soff, vtmp):
    lp, dn = a.newlabel("POLL"), a.newlabel("POLLD")
    a("s_mov_b32 s69, 0x40000")
    a.label(lp)
    a(f"buffer_load_dwordx2 {vr(vtmp, 2)}, v{vaddr}, {WS}, s{soff} offen sc1")
    a("s_waitcnt vmcnt(0)")
    a(f"v_cmp_eq_u64 vcc, s[50:51], {vr(vtmp, 2)}")
    a("s_sub_u32 s69, s69, 1")
    a(f"s_cbranch_scc1 {dn}")
    a("s_cmp_eq_u64 vcc, -1")
    a(f"s_cbranch_scc1 {dn}")
    a(f"s_sleep {OPT.get('sleep', 4)}")
    a(f"s_branch {lp}")
    a.label(dn)
    a.vreset()


def gen_prologue(a):
    a("""
    s_cmp_ge_u32 s2, 256
    s_cbranch_scc1 L_END
    """)
    stamp(a, 0)
    stamp(a, 1, True)
    a("""
    s_load_dwordx16 s[4:19], s[0:1], 0
    s_load_dwordx4 s[20:23], s[0:1], 64
    s_load_dwordx2 s[24:25], s[0:1], 80
    v_lshrrev_b32 v2, 6, v0
    v_and_b32 v1, 63, v0
    s_and_b32 s27, s2, 7
    v_readfirstlane_b32 s26, v2
    s_lshr_b32 s48, s2, 3
    s_and_b32 s56, s48, 7
    s_lshr_b32 s3, s27, 2
    s_lshl_b32 s3, s3, 3
    s_add_u32 s56, s56, s3
    s_lshr_b32 s57, s48, 3
    s_and_b32 s3, s27, 3
    s_lshl_b32 s3, s3, 2
    s_add_u32 s57, s57, s3
    s_cmp_ge_u32 s57, 14
    s_cselect_b32 s58, 1, 0
    s_mul_i32 s59, s57, 3
    v_lshlrev_b32 v9, 4, v1
    s_mov_b32 s52, 0
    s_mov_b32 s53, -1
    s_cmp_ge_u32 s26, 8
    s_cbranch_scc1 L_AUX
    """)


def gen_p1_compute(a):
    VXR, VT1, VT2 = 10, 18, 19
    XF, WF, AC1, AC2 = 24, 40, 56, 80
    NV = 150
    a(f"""
    s_and_b32 s49, s26, 3
    s_lshr_b32 s62, s26, 2
    s_lshl_b32 s61, s49, 12
    v_and_b32 v2, 31, v1
    v_lshrrev_b32 v3, 5, v1
    v_bfe_u32 v4, v1, 1, 3
    v_lshlrev_b32 v5, 7, v2
    v_add_u32 v5, s61, v5
    v_cmp_eq_u32 s[54:55], 28, v2
    v_cmp_le_u32 s[46:47], 28, v2
    """)
    for s in range(4):
        a(f"v_add_u32 v6, {2 * s}, v3")
        a("v_xor_b32 v6, v6, v4")
        a(f"v_lshl_add_u32 v{VXR + s}, v6, 4, v5")
        a(f"v_add_u32 v{VXR + 4 + s}, 65536, v{VXR + s}")
    a(f"""
    v_bfe_u32 v4, v1, 4, 1
    v_bfe_u32 v5, v1, 2, 2
    v_and_b32 v6, 3, v1
    v_lshlrev_b32 v6, 3, v6
    v_lshl_add_u32 v8, v3, 9, v6
    v_lshl_add_u32 v8, v5, 6, v8
    v_lshl_add_u32 v8, v4, 5, v8
    s_lshl_b32 s61, s62, 13
    s_add_u32 s61, s61, {FB}
    v_add_u32 v{VT1}, s61, v8
    v_lshl_add_u32 v7, v3, 10, v6
    v_lshl_add_u32 v7, v5, 7, v7
    v_lshl_add_u32 v7, v4, 13, v7
    s_lshl_b32 s61, s62, 12
    v_add_u32 v7, s61, v7
    v_and_b32 v5, 2, v5
    v_xor_b32 v5, v5, v4
    s_and_b32 s63, s26, 2
    v_xor_b32 v5, s63, v5
    v_lshl_add_u32 v{VT2}, v5, 5, v7
    v_xor_b32 v5, 1, v5
    v_lshl_add_u32 v{VT2 + 1}, v5, 5, v7
    v_add_u32 v{VT2 + 2}, {FB}, v{VT2}
    v_add_u32 v{VT2 + 3}, {FB}, v{VT2 + 1}
    s_waitcnt lgkmcnt(0)
    """)
    srd(a, 28, 24, WS_SIZE)
    sk = a.newlabel("NSKIP")
    a(f"""
    v_mov_b32 v{NV + 2}, 0
    s_lshl_b32 s3, s2, 4
    s_add_u32 s3, s3, s26
    s_cmp_lg_u32 s3, 7
    s_cbranch_scc1 {sk}
    s_memrealtime s[50:51]
    s_waitcnt lgkmcnt(0)
    s_mul_i32 s44, s51, 0x7f4a7c15
    s_mul_i32 s45, s50, 0x9e3779b9
    s_mul_hi_u32 s51, s50, 0x7f4a7c15
    s_mul_i32 s50, s50, 0x7f4a7c15
    s_add_u32 s51, s51, s44
    s_add_u32 s51, s51, s45
    s_xor_b32 s50, s50, s51
    s_or_b32 s50, s50, 1
    v_mov_b32 v{NV + 4}, s50
    v_mov_b32 v{NV + 5}, s51
    s_mov_b64 exec, 1
    global_store_dwordx2 v{NV + 2}, {vr(NV + 4, 2)}, s[22:23] sc0 sc1
    s_mov_b64 exec, -1
    """)
    a.label(sk)
    qscale = math.log2(math.e) / math.sqrt(28.0)
    a("""
    s_lshl_b32 s60, s62, 1
    s_add_u32 s60, s60, s59
    s_lshl_b32 s64, s56, 2
    s_add_u32 s64, s64, s49
    s_and_b32 s43, s26, 1
    s_lshl_b32 s43, s43, 13
    s_lshl_b32 s61, s49, 12
    s_sub_u32 s43, s43, s61
    """)
    a("""
    v_and_b32 v2, 31, v1
    v_cmp_lt_u32 vcc, 10, v2
    v_mov_b32 v3, v2
    v_lshrrev_b32 v5, 5, v1
    v_addc_co_u32 v3, vcc, 0, v3, vcc
    v_cmp_lt_u32 vcc, 13, v2
    v_and_b32 v6, 1, v2
    v_and_b32 v7, 2, v2
    v_addc_co_u32 v3, vcc, 0, v3, vcc
    v_cmp_lt_u32 vcc, 24, v2
    v_lshlrev_b32 v6, 2, v6
    v_lshl_add_u32 v6, v7, 3, v6
    v_addc_co_u32 v3, vcc, 0, v3, vcc
    v_add_u32 v6, 11, v6
    v_cmp_lt_u32 vcc, 27, v2
    s_nop 1
    v_cndmask_b32 v3, v3, v6, vcc
    v_lshl_add_u32 v3, v5, 5, v3
    v_lshlrev_b32 v3, 4, v3
    s_cmp_ge_u32 s60, 32
    s_cselect_b64 vcc, -1, 0
    s_nop 0
    v_cndmask_b32 v23, v9, v3, vcc
    """)
    def ft_addr(dst, j):
        a(f"s_add_u32 s66, s60, {j}")
        a(f"s_mul_i32 s44, s66, {FS}")
        a("s_lshl_b32 s3, s64, 3")
        a("s_add_u32 s44, s44, s3")
        a(f"s_add_u32 s44, s44, {WS_FQ}")
        a("s_and_b32 s45, s66, 15")
        a("s_lshl_b32 s45, s45, 2")
        a("s_bfe_u32 s3, s64, 0x20001")
        a("s_add_u32 s45, s45, s3")
        a(f"s_mul_i32 s45, s45, {FS}")
        a("s_lshr_b32 s3, s66, 5")
        a("s_lshl_b32 s3, s3, 3")
        a("s_lshr_b32 s61, s64, 3")
        a("s_add_u32 s3, s3, s61")
        a("s_lshl_b32 s3, s3, 1")
        a("s_and_b32 s61, s64, 1")
        a("s_add_u32 s3, s3, s61")
        a("s_lshl_b32 s3, s3, 3")
        a("s_add_u32 s45, s45, s3")
        a(f"s_add_u32 s45, s45, {WS_FKV}")
        a("s_cmp_lt_u32 s66, 16")
        a(f"s_cselect_b32 s{dst}, s44, s45")

    for j in range(2):
        ft_addr(40 + j, j)
        a("s_and_b32 s61, s66, 15")
        a("s_lshl_b32 s61, s61, 6")
        a("s_add_u32 s61, s61, s64")
        a("s_cmp_lt_u32 s66, 16")
        a(f"s_cselect_b32 s{32 + 2 * j}, {f2u(qscale):#x}, 1.0")
        a(f"s_mov_b32 s{33 + 2 * j}, s{32 + 2 * j}")
        a(f"s_cselect_b32 s{36 + j}, 0, 0x3f80")
        a("s_cselect_b32 s3, 11, 12")
        a(f"s_cselect_b32 s44, {WS_Q}, {WS_KV}")
        a("s_lshl_b32 s61, s61, s3")
        a(f"s_add_u32 s{38 + j}, s61, s44")
    a("""
    s_cmp_ge_u32 s26, 4
    s_cselect_b32 s41, s40, s41
    s_cbranch_scc1 P1_Y
    s_cmp_ge_u32 s60, 32
    s_cbranch_scc1 P1_XV
    """)

    def xaddr(c, s):
        return (VXR + s, c * BLK) if c < 4 else (VXR + 4 + s, c * BLK - 65536)

    def reads2(k):
        c, s = divmod(k, 4)
        b = k % 2
        reg, off = xaddr(c, s)
        for r in range(2):
            a(f"ds_read_b128 {vr(XF + b * 8 + r * 4, 4)}, v{reg} offset:{off + r * 4096}")
        blk = W_BLK[k // 2]
        base, o = (VT2, blk * BLK) if blk < 4 else (VT2 + 2, blk * BLK - FB)
        o += (k % 2) * 2048
        for j in range(2):
            d = WF + b * 8 + j * 4
            a(f"ds_read_b64_tr_b16 {vr(d, 2)}, v{base + j} offset:{o}")
            a(f"ds_read_b64_tr_b16 {vr(d + 2, 2)}, v{base + j} offset:{o + 512}")

    def reads1(k, ns):
        c, s = divmod(k, 4)
        b = k % 2
        reg, off = xaddr(c, s)
        a(f"ds_read_b128 {vr(XF + b * 8, 4)}, v{reg} offset:{off}")
        for j in range(ns):
            d = WF + b * 8 + j * 4
            o = (c % 3) * BLK + j * 4096 + s * 1024
            a(f"ds_read_b64_tr_b16 {vr(d, 2)}, v{VT1} offset:{o}")
            a(f"ds_read_b64_tr_b16 {vr(d + 2, 2)}, v{VT1} offset:{o + 256}")

    def pass1(ns, swap):
        stamp(a, 2)
        a("s_barrier")
        stamp(a, 3)
        stamp(a, 3, grp=3)
        stamp2(a, 2)
        reads1(0, ns)
        for k in range(28):
            a("s_waitcnt lgkmcnt(0)")
            if (k + 1) % 4 == 0 and k + 1 < 28:
                a("s_barrier")
                stamp(a, 3 + (k + 1) // 4, grp=3)
            if k + 1 < 28:
                reads1(k + 1, ns)
            b = k % 2
            for j in range(ns):
                d = AC1 + j * 16
                w, x = WF + b * 8 + j * 4, XF + b * 8
                if swap:
                    mfma(a, d, x, w, None if k == 0 else d)
                else:
                    mfma(a, d, w, x, None if k == 0 else d)

    T = HP

    def epi_qk(d, j):
        sc = 32 + 2 * j
        for p in range(16):
            a(f"v_mul_f32 v{d + p}, s{sc}, v{d + p}")
        a(f"v_mov_b32 v{T}, s{36 + j}")
        for p in range(8):
            a(f"v_cvt_pk_bf16_f32 v{d + p}, v{d + 2 * p}, v{d + 2 * p + 1}")
        a(f"v_cndmask_b32 v{d + 6}, v{d + 6}, v{T}, s[52:53]")
        a(f"v_cndmask_b32 v{d + 7}, v{d + 7}, 0, s[52:53]")

    def epi_v(d, j):
        a(f"v_mov_b32 v{T}, 0x3f803f80")
        a(f"v_cndmask_b32 v{T}, 0, v{T}, s[54:55]")
        for p in range(8):
            a(f"v_cvt_pk_bf16_f32 v{d + p}, v{d + 2 * p}, v{d + 2 * p + 1}")
        for p in range(8):
            a(f"v_cndmask_b32 v{d + p}, v{d + p}, v{T}, s[46:47]")
        a(f"s_add_u32 s{38 + j}, s{38 + j}, 2048")

    def mid(ywave):
        a(f"global_load_dwordx2 {vr(NONCE_V, 2)}, v{NV + 2}, s[22:23] sc1")
        a("s_barrier")
        stamp(a, 4)
        stamp(a, 10, grp=3)
        stamp2(a, 4)
        for i in range(8):
            a(f"v_add_u32 v{VXR + i}, s43, v{VXR + i}")
        reads2(0)

    for lab, ns, swap in (("P1_XN", 2, False), ("P1_XV", 2, True), ("P1_YN", 1, False), ("P1_YV", 1, True)):
        if lab == "P1_YN":
            a.label("P1_Y")
            a("s_cmp_ge_u32 s60, 32")
            a("s_cbranch_scc1 P1_YV")
        a.label(lab)
        pass1(ns, swap)
        mid(ns == 1)
        for j in range(ns):
            (epi_v if swap else epi_qk)(AC1 + j * 16, j)
        if lab != "P1_YV":
            a("s_branch P2_START")
    a.label("P2_START")

    a("s_cmp_eq_u32 s58, 1")
    a("s_cbranch_scc1 P2_IDLE")

    def qkv_store(n):
        j, hf = divmod(n, 2)
        if j:
            sk = a.newlabel("YSKIP")
            a("s_cmp_ge_u32 s26, 4")
            a(f"s_cbranch_scc1 {sk}")
        a(f"buffer_store_dwordx4 {vr(AC1 + j * 16 + hf * 4, 4)}, v23, {WS}, s{38 + j} offen offset:{hf * 1024} sc1")
        if j:
            a.label(sk)

    def hooks(j):
        if j == OPT.get("fb", 6):
            a("s_waitcnt vmcnt(0)")
            nonce_check(a, NV + 2)
            flag_store(a, [40, 41])
            a.vreset()

    for k in range(28):
        a("s_waitcnt lgkmcnt(0)")
        bar = (k + 1) % 2 == 0 and (k + 1) // 2 in P2_BARS[:-1]
        if bar:
            a("s_barrier")
            if (k + 1) // 2 <= 12:
                stamp(a, 1 + (k + 1) // 2, grp=1)
            if k + 1 == 28:
                stamp(a, 5)
        b = k % 2
        n0 = len(a.L)
        if k + 1 < 28:
            reads2(k + 1)
        rd = a.L[n0:]
        del a.L[n0:]
        n = 0
        for j in range(2):
            for r in range(2):
                d = AC2 + (j * 2 + r) * 16
                mfma(a, d, WF + b * 8 + j * 4, XF + b * 8 + r * 4, None if k == 0 else d)
                if n < 2:
                    a.L.extend(rd[3 * n:3 * n + 3])
                n += 1
        qs = OPT.get("qs", 2)
        if k % 2 == 0 and qs <= k < qs + 8:
            qkv_store((k - qs) // 2)
        if bar:
            hooks((k + 1) // 2)
        if k == 19 and OPT.get("xprio", 1):
            a("s_sub_u32 s3, 1, s62")
            a("s_cbranch_scc1 P2_NOPRIO")
            a("s_cmp_eq_u32 s62, 1")
            a("s_cbranch_scc1 P2_NOPRIO")
            a("s_setprio 2")
            a.label("P2_NOPRIO")
    stamp(a, 6)
    stamp2(a, 6)
    VC3, VC1, VONE = 10, 12, 14
    c1 = -2.0 * math.log2(math.e) * math.sqrt(2.0 / math.pi)
    c3 = c1 * 0.044715
    a(f"""
    s_lshl_b32 s65, s56, 1
    s_and_b32 s3, s26, 1
    s_add_u32 s65, s65, s3
    s_lshl_b32 s63, s57, 2
    s_lshr_b32 s3, s26, 1
    s_add_u32 s63, s63, s3
    s_mul_i32 s40, s65, 112
    s_add_u32 s40, s40, s63
    s_lshl_b32 s40, s40, 11
    s_add_u32 s40, s40, {WS_H}
    s_add_u32 s42, s40, {112 * 1024}
    s_mul_i32 s44, s63, 37
    s_lshr_b32 s44, s44, 9
    s_mul_i32 s45, s44, 14
    s_sub_u32 s45, s63, s45
    s_lshl_b32 s59, s65, 2
    s_add_u32 s59, s59, s44
    s_mul_i32 s59, s59, {FS}
    s_lshl_b32 s45, s45, 3
    s_add_u32 s59, s59, s45
    s_add_u32 s59, s59, {WS_FH}
    v_mov_b32 v{VC3}, {f2u(c3):#x}
    v_mov_b32 v{VC3 + 1}, {f2u(c3):#x}
    v_mov_b32 v{VC1}, {f2u(c1):#x}
    v_mov_b32 v{VC1 + 1}, {f2u(c1):#x}
    v_mov_b32 v{VONE}, 1.0
    v_mov_b32 v{VONE + 1}, 1.0
    """)
    T2 = XF

    def epi_ffn(d, r, j, packed):
        T = T2
        o = HP + (r * 2 + j) * 4
        if packed:
            for p in range(4):
                a(f"v_pk_mul_f32 {vr(T + 2 * p, 2)}, {vr(d + 2 * p, 2)}, {vr(d + 2 * p, 2)}")
            for p in range(4):
                a(f"v_pk_fma_f32 {vr(T + 2 * p, 2)}, {vr(T + 2 * p, 2)}, {vr(VC3, 2)}, {vr(VC1, 2)}")
            for p in range(4):
                a(f"v_pk_mul_f32 {vr(T + 2 * p, 2)}, {vr(T + 2 * p, 2)}, {vr(d + 2 * p, 2)}")
        else:
            for p in range(8):
                a(f"v_mul_f32 v{T + p}, v{d + p}, v{d + p}")
            for p in range(8):
                a(f"v_fma_f32 v{T + p}, v{T + p}, v{VC3}, v{VC1}")
            for p in range(8):
                a(f"v_mul_f32 v{T + p}, v{T + p}, v{d + p}")
        for p in range(8):
            a(f"v_exp_f32 v{T + p}, v{T + p}")
        if packed:
            for p in range(4):
                a(f"v_pk_mul_f32 {vr(T + 8 + 2 * p, 2)}, {vr(d + 2 * p, 2)}, {vr(d + 8 + 2 * p, 2)}")
            for p in range(4):
                a(f"v_pk_add_f32 {vr(T + 2 * p, 2)}, {vr(T + 2 * p, 2)}, {vr(VONE, 2)}")
        else:
            for p in range(8):
                a(f"v_mul_f32 v{T + 8 + p}, v{d + p}, v{d + 8 + p}")
            for p in range(8):
                a(f"v_add_f32 v{T + p}, 1.0, v{T + p}")
        for p in range(8):
            a(f"v_rcp_f32 v{T + p}, v{T + p}")
        a("s_nop 0")
        if packed:
            for p in range(4):
                a(f"v_pk_mul_f32 {vr(T + 2 * p, 2)}, {vr(T + 2 * p, 2)}, {vr(T + 8 + 2 * p, 2)}")
        else:
            for p in range(8):
                a(f"v_mul_f32 v{T + p}, v{T + p}, v{T + 8 + p}")
        for p in range(4):
            a(f"v_cvt_pk_bf16_f32 v{o + p}, v{T + 2 * p}, v{T + 2 * p + 1}")

    tiles = [(j, r) for j in range(2) for r in range(2)]
    a("s_cmp_eq_u32 s62, 1")
    a("s_cbranch_scc1 P2_GELY")
    a("s_setprio 0")
    xb = OPT.get("xb", 2)
    for n, (j, r) in enumerate(tiles):
        epi_ffn(AC2 + (j * 2 + r) * 16, r, j, n > xb)
        if n == xb:
            a("s_barrier")
    if OPT.get("xstore", 0):
        for j, r in tiles:
            a(f"buffer_store_dwordx4 {vr(HP + (r * 2 + j) * 4, 4)}, v9, {WS}, s{40 + 2 * r} offen offset:{j * 1024} sc1")
    a("s_branch P1_DONE")
    a.label("P2_GELY")
    yb = OPT.get("yb", 0)
    if yb < 0:
        a("s_barrier")
    for n, (j, r) in enumerate(tiles):
        epi_ffn(AC2 + (j * 2 + r) * 16, r, j, True)
        if n == yb:
            a("s_barrier")
    a("s_branch P1_DONE")
    a.label("P2_IDLE")
    for n in range(4):
        qkv_store(n)
    hooks(OPT.get("fb", 6))
    a("s_waitcnt lgkmcnt(0)")
    a("s_cmp_lt_u32 s26, 2")
    a("s_cbranch_scc1 P2_GATE")
    srd(a, 32, 16, WD_BYTES)
    srd(a, 44, 8, WO_BYTES)
    a(f"""
    s_lshl_b32 s3, s56, 1
    s_and_b32 s61, s57, 1
    s_add_u32 s3, s3, s61
    s_mul_i32 s3, s3, 6
    s_add_u32 s3, s3, s26
    s_sub_u32 s3, s3, 2
    v_lshlrev_b32 v3, 7, v1
    s_mul_i32 s61, s3, {66 * 128}
    s_mul_i32 s3, s3, {17 * 128}
    buffer_load_dword v4, v3, s[32:35], s61 offen
    s_mov_b64 exec, 0x1ffff
    buffer_load_dword v5, v3, s[44:47], s3 offen
    s_add_u32 s61, s61, {64 * 128}
    s_mov_b64 exec, 3
    buffer_load_dword v6, v3, s[32:35], s61 offen
    s_mov_b64 exec, -1
    s_branch P2_IDLE2
    """)
    a.label("P2_GATE")
    srd(a, 32, 18, GW_BYTES)
    a(f"""
    v_lshrrev_b32 v3, 5, v1
    v_lshlrev_b32 v3, 4, v3
    s_and_b32 s3, s57, 1
    s_lshl_b32 s61, s3, 13
    s_lshl_b32 s44, s26, 12
    s_sub_u32 s61, s61, s44
    s_lshl_b32 s65, s56, 1
    s_add_u32 s65, s65, s3
    """)
    for i in range(8):
        a(f"v_add_u32 v{VXR + i}, s61, v{VXR + i}")
    GA = 24
    a("""
CHUNKORDER
    """)
    for half in range(2):
        for kk in range(14):
            k = half * 14 + kk
            if k % 4 == 0:
                a(f"s_bfe_u32 s37, s68, {0x40000 + k:#x}")
                a("s_lshl_b32 s37, s37, 7")
            a(f"buffer_load_dwordx4 {vr(AC2 + 4 * kk, 4)}, v3, s[32:35], s37 offen offset:{(k % 4) * 32}")
        a("s_waitcnt vmcnt(0)")
        for kk in range(14):
            k = half * 14 + kk
            reg, off = xaddr(k // 4, k % 4)
            a(f"ds_read_b128 {vr(WF + (k % 2) * 4, 4)}, v{reg} offset:{off}")
            a("s_waitcnt lgkmcnt(0)")
            mfma(a, GA, AC2 + 4 * kk, WF + (k % 2) * 4, None if k == 0 else GA)
    a(f"""
    s_lshl_b32 s44, s65, 8
    s_lshl_b32 s3, s26, 7
    s_add_u32 s44, s44, s3
    s_add_u32 s44, s44, {WS_G}
    s_mul_i32 s42, s65, {FS}
    s_lshl_b32 s3, s26, 3
    s_add_u32 s42, s42, s3
    s_add_u32 s42, s42, {WS_FG}
    v_lshlrev_b32 v3, 2, v1
    s_nop 7
    v_mul_f32 v5, {f2u(-math.log2(math.e)):#x}, v{GA}
    v_exp_f32 v5, v5
    s_nop 0
    v_add_f32 v5, 1.0, v5
    v_rcp_f32 v5, v5
    s_mov_b64 exec, 0xffffffff
    s_nop 0
    buffer_store_dword v5, v3, {WS}, s44 offen sc1
    s_mov_b64 exec, -1
    """)
    a("s_waitcnt vmcnt(0)")
    flag_store(a, [42])
    a.label("P2_IDLE2")
    for j in P2_BARS[1:]:
        a("s_barrier")
    a.label("P1_DONE")
    a.vreset()
    stamp(a, 7)


def gen_attention(a):
    VCUR, VNEXT, VBASE = 2, 3, 4
    Q, K, V, S, P, O, T = 10, 18, 34, 66, 98, 106, 122
    VG = 140
    a(f"""
    s_lshr_b32 s60, s48, 4
    s_lshl_b32 s3, s27, 1
    s_add_u32 s60, s60, s3
    s_and_b32 s61, s48, 15
    s_lshl_b32 s61, s61, 2
    s_add_u32 s61, s61, s49
    s_lshl_b32 s38, s60, 18
    s_add_u32 s38, s38, {WS_KV}
    s_lshl_b32 s41, s61, 7
    s_add_u32 s41, s41, {WS_G}
    v_and_b32 v6, 31, v1
    v_lshlrev_b32 v6, 2, v6
    s_lshl_b32 s3, s49, 14
    s_add_u32 s3, s3, {RING + 14336}
    v_add_u32 v5, s3, v9
    s_lshl_b32 s43, s62, 12
    v_add_u32 v{VBASE}, s43, v9
    v_mov_b32 v{VCUR}, v{VBASE}
    v_add_u32 v{VNEXT}, 32768, v{VBASE}
    s_mov_b32 s46, 32768
    s_mov_b32 s47, 8
    s_movk_i32 s63, 0x184
    s_cmp_eq_u32 s58, 1
    s_cselect_b32 s63, 4, s63
    """)
    for r in range(16):
        a(f"v_mov_b32 v{O + r}, 0")
    make_tag(a, 7, 8)
    stamp(a, 8)
    a(f"""
    s_barrier
    ds_read_b128 {vr(Q, 4)}, v5
    ds_read_b128 {vr(Q + 4, 4)}, v5 offset:1024
    ds_read_b128 {vr(V + 24, 4)}, v9
    ds_read_b128 {vr(V + 28, 4)}, v9 offset:1024
    """)
    for t in range(2):
        for j in range(2):
            a(f"ds_read_b128 {vr(K + t * 8 + j * 4, 4)}, v{VCUR} offset:{t * 8192 + j * 1024}")
        for j in range(2):
            a(f"ds_read_b128 {vr(V + t * 8 + j * 4, 4)}, v{VCUR} offset:{t * 8192 + 2048 + j * 1024}")
    a("s_waitcnt lgkmcnt(0)" if DIAG else "s_waitcnt lgkmcnt(8)")
    mfma(a, S + 16, V + 24, Q, None)
    mfma(a, S + 16, V + 28, Q + 4, S + 16)
    a("s_nop 15")

    def rowmax(src, dst):
        a(f"v_max3_f32 v{dst}, v{src}, v{src + 1}, v{src + 2}")
        for r in range(3, 15, 2):
            a(f"v_max3_f32 v{dst}, v{dst}, v{src + r}, v{src + r + 1}")
        a(f"v_max_f32 v{dst}, v{dst}, v{src + 15}")

    def crossmax(dst, tmp):
        a(f"v_mov_b32 v{tmp}, v{dst}")
        a("s_nop 1")
        a(f"v_permlane32_swap_b32 v{dst}, v{tmp}")
        a("s_nop 1")
        a(f"v_max_f32 v{dst}, v{dst}, v{tmp}")

    rowmax(S + 16, T)
    crossmax(T, T + 1)
    a(f"""
    v_mov_b32 v{T + 1}, 0
    v_cvt_pk_bf16_f32 v{T}, -v{T}, v{T + 1}
    v_cndmask_b32 v{Q + 6}, v{Q + 6}, v{T}, s[52:53]
    s_waitcnt lgkmcnt(0)
    s_nop 0
    """)
    mfma(a, S, K, Q, None)
    mfma(a, S, K + 4, Q + 4, S)
    for i in range(4):
        a(f"v_mov_b32 v{P + 4 + i}, 0")
        a(f"v_mov_b32 v{V + 28 + i}, 0")
    a("s_nop 7")
    PRIO = {2: 3, 3: 2, 0: 1, 1: 0} if not OPT.get("lad2") else {2: 2, 3: 1, 0: 1, 1: 0}
    stamp(a, 9)
    stamp2(a, 8)
    a.raw(".p2align 6")
    if OPT.get("shift"):
        a("s_nop 0")
    a.label("A_LOOP")
    for it, u in [(it, u) for it in range(8 if (DIAG and OPT.get('unroll')) else 1) for u in range(4)]:
        sc = S + (u % 2) * 16
        sn = S + ((u + 1) % 2) * 16
        kn = K + ((u + 1) % 2) * 8
        a("s_waitcnt lgkmcnt(0)")
        if u == 2:
            a("s_barrier")
            if it in (0, 3, 7) and OPT.get("unroll"):
                stamp(a, {0: 10, 3: 11, 7: 12}[it])
        a(f"s_setprio {PRIO[u]}")
        va = VCUR if u < 2 else VNEXT
        off = ((u + 2) % 4) * 8192
        pu = (u - 1) % 4

        def e(*idx):
            for i in idx:
                a(f"v_exp_f32 v{sc + i}, v{sc + i}")

        def c(i):
            a(f"v_cvt_pk_bf16_f32 v{P + i}, v{sc + 2 * i}, v{sc + 2 * i + 1}")

        e(0, 1)
        mfma(a, O, V + pu * 8 + 4, P + 4, O)
        for j in range(2):
            a(f"ds_read_b128 {vr(K + (u % 2) * 8 + j * 4, 4)}, v{va} offset:{off + j * 1024}")
        e(2, 3)
        c(0)
        e(4, 5)
        c(1)
        mfma(a, sn, kn, Q, None)
        for j in range(2):
            a(f"ds_read_b128 {vr(V + ((u + 2) % 4) * 8 + j * 4, 4)}, v{va} offset:{off + 2048 + j * 1024}")
        e(6, 7)
        c(2)
        e(8)
        c(3)
        e(9)
        mfma(a, sn, kn + 4, Q + 4, sn)
        if u in (1, 3):
            a(f"s_bitcmp1_b32 s63, s47")
            a(f"s_cbranch_scc1 A_RARE{u}")
            a.label(f"A_BACK{u}")
        e(10, 11)
        c(4)
        e(12, 13)
        c(5)
        mfma(a, O, V + u * 8, P, O)
        e(14, 15)
        c(6)
        c(7)
        if u == 3:
            a(f"v_mov_b32 v{VCUR}, v{VNEXT}")
            a("s_add_u32 s46, s46, 32768")
            a("s_cmp_eq_u32 s46, 98304")
            a("s_cselect_b32 s46, 0, s46")
            a(f"v_add_u32 v{VNEXT}, s46, v{VBASE}")
            a("s_sub_u32 s47, s47, 1")
            a("s_cmp_lg_u32 s47, 0")
    a("s_cbranch_scc1 A_LOOP")
    mfma(a, O, V + 28, P + 4, O)
    stamp(a, 13)
    stamp2(a, 10)
    a(f"""
    s_lshl_b32 s43, s49, 12
    s_add_u32 s43, s43, 32768
    v_add_u32 v5, s43, v9
    s_waitcnt lgkmcnt(0)
    s_nop 11
    s_cmp_eq_u32 s62, 0
    s_cbranch_scc1 A_FIN
    """)
    for q in range(4):
        a(f"ds_write_b128 v5, {vr(O + 4 * q, 4)} offset:{q * 1024}")
    a("s_waitcnt lgkmcnt(0)")
    a("s_barrier")
    stamp_flush(a)
    a("s_endpgm")
    a.label("A_FIN")
    a("s_barrier")
    stamp(a, 10)
    for q in range(4):
        a(f"ds_read_b128 {vr(S + 4 * q, 4)}, v5 offset:{q * 1024}")
    a("s_waitcnt lgkmcnt(0)")
    for p in (7, 0, 1, 2, 3, 4, 5, 6, 8, 9, 10, 11, 12, 13, 14):
        a(f"v_add_f32 v{O + p}, v{O + p}, v{S + p}")

    def get_l():
        a(f"v_mov_b32 v{T}, v{O + 7}")
        a(f"v_mov_b32 v{T + 1}, v{O + 7}")
        a(f"v_mov_b32 v{O + 7}, 0")
        a(f"v_mov_b32 v{O + 15}, 0")
        a(f"v_permlane32_swap_b32 v{T + 1}, v{T}")

    get_l()
    for c4 in range(4):
        a(f"v_mul_f32 v{T + 2 + c4}, 0, v{O + c4}")
    for p in range(4, 16):
        if p not in (7, 15):
            a(f"v_fmac_f32 v{T + 2 + p % 4}, 0, v{O + p}")
    a(f"""
    v_add_f32 v{T + 2}, v{T + 2}, v{T + 3}
    v_add_f32 v{T + 4}, v{T + 4}, v{T + 5}
    v_add_f32 v{T + 2}, v{T + 2}, v{T + 4}
    s_mov_b32 s44, {f2u(2.0 ** -30):#x}
    s_mov_b32 s45, {f2u(2.0 ** 60):#x}
    v_cmp_eq_f32 s[64:65], 0, v{T + 2}
    v_cmp_le_f32 s[66:67], s44, v{T + 1}
    v_cmp_ge_f32 vcc, s45, v{T + 1}
    s_and_b64 s[64:65], s[64:65], s[66:67]
    s_and_b64 s[64:65], s[64:65], vcc
    s_cmp_eq_u64 s[64:65], -1
    s_cbranch_scc0 A_FALL
    """)
    a.label("A_NORM")
    stamp(a, 11)
    a(f"""
    v_rcp_f32 v{T + 2}, v{T + 1}
    s_lshl_b32 s43, s61, 4
    s_add_u32 s43, s43, s60
    s_lshl_b32 s44, s43, 11
    s_add_u32 s44, s44, {WS_O}
    s_waitcnt vmcnt(0)
    v_mul_f32 v{T + 2}, v{T + 2}, v{VG}
    """)
    for p in range(16):
        if p not in (7, 15):
            a(f"v_mul_f32 v{O + p}, v{O + p}, v{T + 2}")
    for p in range(8):
        a(f"v_cvt_pk_bf16_f32 v{P + p}, v{O + 2 * p}, v{O + 2 * p + 1}")
    stamp(a, 12)
    a(f"v_or_b32 v{P + 3}, v{P + 3}, v7")
    a(f"v_or_b32 v{P + 7}, v{P + 7}, v7")
    a(f"buffer_store_dwordx4 {vr(P, 4)}, v9, {WS}, s44 offen sc1")
    a(f"buffer_store_dwordx4 {vr(P + 4, 4)}, v9, {WS}, s44 offen offset:1024 sc1")
    stamp_flush(a)
    a("s_endpgm")
    xs = OPT.get("xstore", 0)
    for u in (1, 3):
        a.label(f"A_RARE{u}")
        n1, n2 = a.newlabel("AR"), a.newlabel("AR")
        a("s_cmp_lg_u32 s47, 8")
        a(f"s_cbranch_scc1 {n1}")
        if xs:
            a("s_cmp_eq_u32 s62, 0")
            a(f"s_cbranch_scc1 A_BACK{u}")
        for j in range(2):
            a(f"buffer_store_dwordx4 {vr(HP + (u // 2 * 2 + j) * 4, 4)}, v9, {WS}, s{40 + 2 * (u // 2)} offen offset:{j * 1024} sc1")
        a(f"s_branch A_BACK{u}")
        a.label(n1)
        if u == OPT.get("hfu", 1):
            a("s_cmp_lg_u32 s47, 7")
            a(f"s_cbranch_scc1 {n2}")
            a("s_waitcnt vmcnt(0)")
            flag_store(a, [59])
            a(f"s_branch A_BACK{u}")
            a.label(n2)
        if u == 3:
            a("s_cmp_lg_u32 s47, 2")
            a(f"s_cbranch_scc1 A_BACK{u}")
            a(f"buffer_load_dword v{VG}, v6, {WS}, s41 offen sc1")
        a(f"s_branch A_BACK{u}")
    a.label("A_FALL")
    a(f"""
    v_cndmask_b32 v{Q + 6}, v{Q + 6}, 0, s[52:53]
    v_mov_b32 v{T + 6}, 0xff800000
    s_mov_b32 s44, s38
    s_mov_b32 s47, 64
    """)
    a.label("A_FL1")
    a(f"buffer_load_dwordx4 {vr(K, 4)}, v9, {WS}, s44 offen sc1")
    a(f"buffer_load_dwordx4 {vr(K + 4, 4)}, v9, {WS}, s44 offen offset:1024 sc1")
    a("s_waitcnt vmcnt(0)")
    mfma(a, S, K, Q, None)
    mfma(a, S, K + 4, Q + 4, S)
    a("s_nop 15")
    rowmax(S, T + 7)
    a(f"""
    v_max_f32 v{T + 6}, v{T + 6}, v{T + 7}
    s_add_u32 s44, s44, 4096
    s_sub_u32 s47, s47, 1
    s_cmp_lg_u32 s47, 0
    s_cbranch_scc1 A_FL1
    """)
    crossmax(T + 6, T + 7)
    for r in range(16):
        a(f"v_mov_b32 v{O + r}, 0")
    a("s_mov_b32 s44, s38")
    a("s_mov_b32 s47, 64")
    a.label("A_FL2")
    a(f"buffer_load_dwordx4 {vr(K, 4)}, v9, {WS}, s44 offen sc1")
    a(f"buffer_load_dwordx4 {vr(K + 4, 4)}, v9, {WS}, s44 offen offset:1024 sc1")
    a(f"buffer_load_dwordx4 {vr(V, 4)}, v9, {WS}, s44 offen offset:2048 sc1")
    a(f"buffer_load_dwordx4 {vr(V + 4, 4)}, v9, {WS}, s44 offen offset:3072 sc1")
    a("s_waitcnt vmcnt(0)")
    mfma(a, S, K, Q, None)
    mfma(a, S, K + 4, Q + 4, S)
    a("s_nop 15")
    for r in range(16):
        a(f"v_sub_f32 v{S + r}, v{S + r}, v{T + 6}")
    for r in range(16):
        a(f"v_exp_f32 v{S + r}, v{S + r}")
    a("s_nop 0")
    for p in range(8):
        a(f"v_cvt_pk_bf16_f32 v{P + p}, v{S + 2 * p}, v{S + 2 * p + 1}")
    a("s_nop 1")
    mfma(a, O, V, P, O)
    mfma(a, O, V + 4, P + 4, O)
    a("""
    s_add_u32 s44, s44, 4096
    s_sub_u32 s47, s47, 1
    s_cmp_lg_u32 s47, 0
    s_cbranch_scc1 A_FL2
    s_nop 15
    """)
    get_l()
    a("s_branch A_NORM")


def gen_aux(a):
    a.label("L_AUX")
    VXE, VXO, VC, VF = 10, 11, 12, 13
    a(f"""
    s_setprio 3
    s_sub_u32 s49, s26, 8
    s_lshl_b32 s3, s56, 7
    s_lshl_b32 s66, s49, 5
    s_add_u32 s3, s3, s66
    v_lshrrev_b32 v2, 3, v1
    v_and_b32 v3, 7, v1
    v_lshrrev_b32 v4, 4, v1
    v_add_u32 v5, s3, v2
    v_mul_u32_u24 v5, 896, v5
    v_xor_b32 v6, v3, v4
    v_lshl_add_u32 v{VXE}, v6, 4, v5
    v_xor_b32 v6, 4, v6
    v_lshl_add_u32 v{VXO}, v6, 4, v5
    v_add_u32 v{VXO}, {8 * 896 - 1024}, v{VXO}
    s_lshl_b32 s3, s49, 4
    v_lshrrev_b32 v4, 2, v1
    v_add_u32 v4, s3, v4
    v_mul_u32_u24 v4, 2688, v4
    v_and_b32 v5, 3, v1
    v_lshl_add_u32 v4, v5, 4, v4
    s_mul_i32 s65, s59, 56
    v_add_u32 v{VC}, s65, v4
    s_lshl_b32 s62, s49, 12
    s_lshl_b32 s63, s49, 10
    s_add_u32 s63, s63, {FB}
CHUNKORDER
    s_waitcnt lgkmcnt(0)
    """)
    srd(a, 32, 4, X_BYTES)
    srd(a, 44, 6, WQKV_BYTES)

    def dma1(c):
        tag = f"c{c}"
        a(f"s_bfe_u32 s37, s68, {0x40000 + 4 * c:#x}")
        a(f"s_mul_i32 s36, s37, {64 * 2688}")
        for j in range(3):
            a(f"s_add_u32 m0, s63, {(c % 3) * BLK + j * 4096}")
            a(f"s_add_u32 s3, s36, {j * 56}")
            a.vmem(f"buffer_load_dwordx4 v{VC}, s[44:47], s3 offen lds", tag)
        a(f"s_add_u32 m0, s62, {c * BLK}")
        a("s_lshl_b32 s3, s37, 7")
        for i in range(4):
            if i == 2:
                a("s_add_u32 s3, s3, 12288")
            a.vmem(f"buffer_load_dwordx4 v{VXO if i % 2 else VXE}, s[32:35], s3 offen offset:{i * 1024} lds", tag)

    stamp(a, 12)
    dma1(0)
    stamp(a, 13)
    dma1(1)
    a(f"""
    v_mul_u32_u24 v4, 3584, v2
    v_lshrrev_b32 v5, 1, v3
    v_and_b32 v6, 2, v2
    v_xor_b32 v5, v5, v6
    s_lshr_b32 s3, s49, 1
    v_xor_b32 v5, s3, v5
    v_lshl_add_u32 v4, v5, 5, v4
    v_and_b32 v7, 1, v3
    v_lshl_add_u32 v4, v7, 4, v4
    s_lshl_b32 s64, s57, 1
    s_and_b32 s65, s49, 1
    s_add_u32 s64, s64, s65
    s_lshl_b32 s64, s64, 7
    v_add_u32 v{VF}, s64, v4
    s_cmp_ge_u32 s49, 2
    s_cselect_b64 s[12:13], s[14:15], s[12:13]
    s_cmp_eq_u32 s58, 1
    s_cselect_b32 s66, 0, {WG_BYTES}
    """)
    srd(a, 40, 12, "s66")
    srd(a, 28, 24, WS_SIZE)

    def dma2(j):
        a(f"s_add_u32 m0, s62, {W_BLK[j] * BLK}")
        a(f"s_bfe_u32 s37, s68, {0x40000 + 4 * (j // 2):#x}")
        a(f"s_mul_i32 s3, s37, {64 * 3584}")
        if j % 2:
            a(f"s_add_u32 s3, s3, {32 * 3584}")
        for i in range(4):
            if i:
                a(f"s_add_u32 s3, s3, {8 * 3584 - 1024}")
            a.vmem(f"buffer_load_dwordx4 v{VF}, s[40:43], s3 offen offset:{i * 1024} lds", f"f{j}")

    def issue2(b):
        for j in range(14):
            if W_ISSUE[j] == b:
                dma2(j)

    for c in range(7):
        stamp(a, 3 + c, grp=3)
        a.vwait(f"c{c}")
        a("s_barrier")
        if c + 2 <= 6:
            dma1(c + 2)
        issue2(c - 7)
    a(f"""
    s_lshr_b32 s60, s48, 4
    s_lshl_b32 s3, s27, 1
    s_add_u32 s60, s60, s3
    s_lshl_b32 s38, s60, 18
    s_add_u32 s38, s38, {WS_KV}
    s_lshl_b32 s39, s49, 13
    v_add_u32 v8, s39, v9
    v_mov_b32 v2, 0
    s_and_b32 s59, s48, 15
    s_lshl_b32 s59, s59, 2
    s_add_u32 s59, s59, s49
    s_lshl_b32 s61, s60, 2
    s_add_u32 s61, s61, s49
    s_mul_i32 s61, s61, {FS}
    s_add_u32 s61, s61, {WS_FKV}
    v_lshlrev_b32 v3, 3, v1
    v_add_u32 v3, s61, v3
    s_mul_i32 s61, s60, {FS}
    s_lshr_b32 s58, s59, 1
    s_lshl_b32 s3, s59, 3
    s_add_u32 s61, s61, s3
    s_add_u32 s61, s61, {WS_FQ}
    v_mov_b32 v4, s61
    v_cmp_gt_u32 vcc, 32, v1
    s_mul_i32 s58, s58, {FS}
    s_lshl_b32 s54, s60, 6
    v_cndmask_b32 v15, v4, v3, vcc
    s_add_u32 s54, s54, s59
    s_lshl_b32 s54, s54, 11
    s_add_u32 s54, s54, {WS_Q}
    s_lshl_b32 s55, s49, 14
    s_add_u32 s55, s55, {RING + 14336}
    s_mov_b32 s67, 0
    """)
    VKV = 8

    def kv(i):
        st = (i % 3) * 32768
        for half in range(2):
            a(f"s_add_u32 m0, s39, {st + half * 4096}")
            a(f"s_add_u32 s3, s38, {i * 32768 + half * 4096}")
            for j in range(4):
                a.vmem(f"buffer_load_dwordx4 v{VKV}, {WS}, s3 offen offset:{j * 1024} sc1 lds", f"kv{i}")

    def load_q():
        a("s_mov_b32 m0, s55")
        a("s_nop 0")
        a.vmem(f"buffer_load_dwordx4 v9, {WS}, s54 offen sc1 lds", "q")
        a.vmem(f"buffer_load_dwordx4 v9, {WS}, s54 offen offset:1024 sc1 lds", "q")

    for n, b in enumerate(P2_BARS):
        if b < 14:
            a.vwait(*[f"f{j}" for j in range(b, P2_BARS[n + 1])])
        if 1 <= b <= 12:
            stamp(a, 1 + b, grp=1)
        a("s_barrier")
        issue2(b)
        if b == 0:
            a.vmem(f"global_load_dwordx2 {vr(NONCE_V, 2)}, v2, s[22:23] sc1", "f2")
        if b == 10:
            nonce_check(a, 2)
            sk = a.newlabel("TRY")
            a(f"buffer_load_dwordx2 {vr(16, 2)}, v15, {WS}, s52 offen sc1")
            a(f"v_readfirstlane_b32 s50, v{NONCE_V}")
            a(f"v_readfirstlane_b32 s51, v{NONCE_V + 1}")
            a("s_waitcnt vmcnt(0)")
            a(f"v_cmp_eq_u64 vcc, s[50:51], {vr(16, 2)}")
            a("s_nop 1")
            a("s_cmp_eq_u64 vcc, -1")
            a(f"s_cbranch_scc0 {sk}")
            a("s_mov_b32 s67, 1")
            kv(0)
            a.label(sk)
            a.vreset()
    stamp(a, 2)
    a("s_cmp_eq_u32 s67, 1")
    a("s_cbranch_scc1 L_KV0D")
    poll(a, 15, 52, 16)
    kv(0)
    a.label("L_KV0D")
    a.vreset()
    stamp(a, 3)
    load_q()
    kv(1)
    a("s_cmp_ge_u32 s48, 28")
    a("s_cbranch_scc1 L_LOADER")
    vm_at_split = list(a.vm)

    VW, VTR, VOWN, VRD, VTO, VO = 10, 11, 13, 14, 160, 162
    ACC, H, WF, VG = 16, 80, 144, 166
    a(f"""
    s_mul_i32 s56, s48, 37
    s_lshr_b32 s56, s56, 8
    s_mul_i32 s57, s56, 7
    s_sub_u32 s57, s48, s57
    s_lshl_b32 s3, s27, 2
    s_add_u32 s56, s56, s3
    s_lshl_b32 s46, s49, 14
    s_add_u32 s46, s46, {RING}
    s_mul_i32 s47, s56, {2 * 112}
    s_mul_i32 s3, s49, 28
    s_add_u32 s47, s47, s3
    s_lshl_b32 s47, s47, 10
    s_add_u32 s47, s47, {WS_H}
    s_mul_i32 s44, s49, {448 * 896}
    s_mul_i32 s45, s49, {112 * 896}
    s_add_u32 s62, s49, 4
    s_sub_u32 s3, s49, 2
    s_cmp_lt_u32 s49, 2
    s_cselect_b32 s62, s62, s3
    s_lshl_b32 s62, s62, 14
    """)
    a(f"""
    v_lshrrev_b32 v3, 3, v1
    v_bfe_u32 v4, v1, 1, 2
    v_and_b32 v5, 2, v3
    v_xor_b32 v4, v4, v5
    v_and_b32 v5, 1, v1
    v_mul_u32_u24 v6, 896, v3
    v_lshl_add_u32 v6, v4, 5, v6
    v_lshl_add_u32 v6, v5, 4, v6
    s_lshl_b32 s3, s57, 7
    v_add_u32 v{VW}, s3, v6
    v_lshrrev_b32 v3, 5, v1
    v_bfe_u32 v4, v1, 4, 1
    v_bfe_u32 v5, v1, 2, 2
    v_and_b32 v6, 3, v1
    v_lshl_add_u32 v7, v3, 2, v5
    v_lshlrev_b32 v7, 7, v7
    v_lshl_add_u32 v7, v6, 3, v7
    v_and_b32 v5, 2, v5
    v_xor_b32 v5, v5, v4
    v_lshl_add_u32 v6, v5, 5, v7
    v_add_u32 v{VTR}, s46, v6
    v_xor_b32 v5, 2, v5
    v_lshl_add_u32 v6, v5, 5, v7
    v_add_u32 v{VTR + 1}, s46, v6
    v_add_u32 v{VOWN}, s46, v9
    s_lshl_b32 s3, s49, 12
    s_add_u32 s3, s3, {RING}
    v_add_u32 v{VRD}, s3, v9
    """)
    srd(a, 32, 16, WD_BYTES)

    def load_w(k):
        a(f"s_add_u32 m0, s46, {(k % 8) * 2048}")
        a(f"s_add_u32 s3, s44, {k * 16 * 896}")
        a.vmem(f"buffer_load_dwordx4 v{VW}, s[32:35], s3 offen lds", f"w{k}")
        a(f"s_add_u32 s3, s44, {k * 16 * 896 + 6144}")
        a.vmem(f"buffer_load_dwordx4 v{VW}, s[32:35], s3 offen offset:1024 lds", f"w{k}")

    def load_h(k, r):
        a(f"s_add_u32 s3, s47, {k * 1024 + r * 112 * 1024}")
        a.vmem(f"buffer_load_dwordx4 {vr(H + ((k % 8) * 2 + r) * 4, 4)}, v9, {WS}, s3 offen sc1", f"h{k}")

    a(f"""
    s_mul_i32 s3, s56, {FS}
    v_mov_b32 v3, s58
    v_mov_b32 v4, s3
    v_cmp_gt_u32 vcc, 4, v1
    v_and_b32 v5, 1, v1
    s_mov_b32 s61, {WS_FG}
    v_cndmask_b32 v3, v4, v3, vcc
    v_lshl_add_u32 v3, v5, 3, v3
    v_add_u32 v163, s61, v3
    """)
    a(f"""
    v_and_b32 v15, 15, v1
    v_min_u32 v15, 13, v15
    v_lshlrev_b32 v15, 3, v15
    s_lshl_b32 s61, s56, 2
    s_add_u32 s61, s61, s49
    s_mul_i32 s61, s61, {FS}
    s_add_u32 s61, s61, {WS_FH}
    v_add_u32 v15, s61, v15
    v_cmp_gt_u32 vcc, 16, v1
    s_nop 1
    v_cndmask_b32 v15, v15, v163, vcc
    v_and_b32 v3, 31, v1
    v_lshlrev_b32 v3, 2, v3
    """)
    kv(2)
    a.vwait("q")
    a(f"s_setprio {OPT.get('gprio', 0)}")
    a("s_barrier")
    stamp(a, 4)
    for k in range(7):
        load_w(k)

    def trd(k):
        b = WF + (k % 2) * 8
        o = (k % 8) * 2048
        for ct in range(2):
            a(f"ds_read_b64_tr_b16 {vr(b + ct * 4, 2)}, v{VTR + ct} offset:{o}")
            a(f"ds_read_b64_tr_b16 {vr(b + ct * 4 + 2, 2)}, v{VTR + ct} offset:{o + 1024}")

    def step(k):
        a.vwait(f"h{k}", f"w{k + 1}")
        a("s_waitcnt lgkmcnt(0)")
        if k + 1 < 28:
            trd(k + 1)
        n = 0
        for r in range(2):
            for ct in range(2):
                d = ACC + (r * 2 + ct) * 16
                mfma(a, d, WF + (k % 2) * 8 + ct * 4, H + ((k % 8) * 2 + r) * 4, None if k == 0 else d)
                if k + 8 < 28:
                    if n == 0:
                        load_w(k + 8)
                    if n == 1:
                        load_h(k + 8, 0)
                    if n == 3:
                        load_h(k + 8, 1)
                n += 1

    spi = OPT.get("spi", 4)
    hs = OPT.get("hs", 3)
    plan = [0] * (hs + 1) + [spi] * (7 - hs) + [OPT.get("spl", 4)]
    k = 0
    for i in range(9):
        if i >= 1 and i + 2 <= 7:
            kv(i + 2)
        if i == 1:
            load_w(7)
        if i == hs:
            poll(a, 15, 52, WF)
            stamp(a, 5)
            for kk in range(8):
                load_h(kk, 0)
                load_h(kk, 1)
            a(f"""
            s_lshl_b32 s3, s56, 8
            s_add_u32 s3, s3, {WS_G}
            """)
            a.vmem(f"buffer_load_dword v{VG}, v3, {WS}, s3 offen sc1", "g")
            a.vmem(f"buffer_load_dword v{VG + 1}, v3, {WS}, s3 offen offset:128 sc1", "g")
            trd(0)
        if i == 7:
            srd(a, 40, 8, WO_BYTES)
            for g4 in range(4):
                a(f"s_add_u32 m0, s62, {g4 * 4096}")
                for j in range(4):
                    if g4 == 3 and j == 3:
                        continue
                    a(f"s_add_u32 s3, s45, {g4 * 32 * 896 + j * 6144}")
                    a.vmem(f"buffer_load_dwordx4 v{VW}, s[40:43], s3 offen offset:{j * 1024} lds", "wo")
        for _ in range(plan[i]):
            if k < 28:
                step(k)
                k += 1
        a.vwait(f"kv{i + 1}")
        a("s_barrier")
        if i in (3, 7, 8):
            stamp(a, {3: 6, 7: 7, 8: 8}[i])
    a(f"s_setprio {OPT.get('tprio', 0)}")
    while k < 28:
        step(k)
        k += 1
    stamp(a, 9)
    a.vwait("g", "wo")
    a(f"""
    v_sub_f32 v2, 1.0, v{VG}
    v_sub_f32 v4, 1.0, v{VG + 1}
    v_mov_b32 v3, v2
    v_mov_b32 v5, v4
    s_lshl_b32 s47, s56, 6
    s_lshl_b32 s3, s49, 3
    s_add_u32 s47, s47, s3
    s_lshl_b32 s47, s47, 10
    s_add_u32 s64, s47, {WS_O}
    s_add_u32 s65, s64, 32768
    s_add_u32 s44, s64, 4096
    s_add_u32 s45, s65, 4096
    s_mov_b32 s66, 15
    s_mov_b32 s69, 0x40000
    """)
    for p in range(32):
        a(f"v_pk_mul_f32 {vr(ACC + 2 * p, 2)}, {vr(ACC + 2 * p, 2)}, {'v[2:3]' if p < 16 else 'v[4:5]'}")
    TA = [2, 3, 4, 5, 6, 7, 10, 11]
    VTAG = 12
    make_tag(a, VTAG, 15)
    a("""
    v_lshrrev_b32 v15, 5, v1
    v_bfe_u32 v160, v1, 2, 2
    v_bfe_u32 v161, v1, 4, 1
    v_and_b32 v163, 3, v1
    v_lshlrev_b32 v163, 3, v163
    v_add_u32 v163, s62, v163
    """)
    for pat, (s0, s1) in enumerate(((0, 4), (8, 11), (14, 18), (22, 25))):
        a(f"v_mul_u32_u24 v{WF}, {s1 - s0}, v15")
        a(f"v_add3_u32 v{WF}, v{WF}, v160, {s0}")
        a(f"v_and_b32 v{WF + 1}, 2, v{WF}")
        a(f"v_xor_b32 v{WF + 1}, v{WF + 1}, v161")
        a(f"v_lshl_add_u32 v{WF}, v{WF}, 7, v163")
        a(f"v_lshl_add_u32 v{TA[2 * pat]}, v{WF + 1}, 5, v{WF}")
        a(f"v_xor_b32 v{TA[2 * pat + 1]}, 64, v{TA[2 * pat]}")
    a.label("O_LOOP")
    for hd in range(4):
        sk = a.newlabel("OSK")
        a(f"s_bitcmp1_b32 s66, {hd}")
        a(f"s_cbranch_scc0 {sk}")
        for u in range(2):
            for r in range(2):
                k = hd * 2 + u
                sreg = (64 if k < 4 else 44) + r
                a(f"buffer_load_dwordx4 {vr(H + (k * 2 + r) * 4, 4)}, v9, {WS}, s{sreg} offen offset:{(k % 4) * 1024} sc1")
        a.label(sk)
    a("s_waitcnt vmcnt(0)")
    for hd in range(4):
        sk = a.newlabel("OSK")
        hb = H + hd * 16
        a(f"s_bitcmp1_b32 s66, {hd}")
        a(f"s_cbranch_scc0 {sk}")
        for u in range(2):
            for ct in range(2):
                for sec in range(2):
                    a(f"ds_read_b64_tr_b16 {vr(WF + u * 8 + ct * 4 + sec * 2, 2)}, v{TA[(u * 2 + sec) * 2 + ct]} offset:{hd * 3584}")
        for q in range(4):
            a(f"v_xor_b32 v{hb + 4 * q + 3}, v{hb + 4 * q + 3}, v{VTAG}")
        a(f"v_or3_b32 v15, v{hb + 3}, v{hb + 7}, v{hb + 11}")
        a(f"v_or_b32 v15, v15, v{hb + 15}")
        a("v_cmp_gt_u32 vcc, 0x10000, v15")
        a("s_waitcnt lgkmcnt(0)")
        a("s_cmp_eq_u64 vcc, -1")
        a(f"s_cbranch_scc0 {sk}")
        a(f"s_bitset0_b32 s66, {hd}")
        for u in range(2):
            for r in range(2):
                for ct in range(2):
                    d = ACC + (r * 2 + ct) * 16
                    mfma(a, d, WF + u * 8 + ct * 4, hb + (u * 2 + r) * 4, d)
        a.label(sk)
    a(f"""
    s_cmp_eq_u32 s66, 0
    s_cbranch_scc1 O_DONE
    s_sub_u32 s69, s69, 1
    s_cbranch_scc1 O_DONE
    s_sleep {OPT.get('osleep', 1)}
    s_branch O_LOOP
    """)
    a.label("O_DONE")
    a.vreset()
    stamp(a, 10)
    srd(a, 32, 20, X_BYTES)
    a(f"""
    v_and_b32 v2, 31, v1
    s_lshr_b32 s66, s49, 1
    s_and_b32 s67, s49, 1
    s_lshl_b32 s3, s56, 1
    s_add_u32 s3, s3, s66
    s_lshl_b32 s3, s3, 5
    v_add_u32 v2, s3, v2
    v_mul_u32_u24 v{VO}, 896, v2
    v_lshrrev_b32 v3, 5, v1
    v_lshl_add_u32 v{VO}, v3, 4, v{VO}
    s_lshl_b32 s63, s57, 7
    s_lshl_b32 s3, s67, 6
    s_add_u32 s63, s63, s3
    """)
    stamp(a, 11)
    for t in range(4):
        for q in range(4):
            a(f"ds_write_b128 v{VOWN}, {vr(ACC + t * 16 + q * 4, 4)} offset:{t * 4096 + q * 1024}")
    a("s_waitcnt lgkmcnt(0)")
    a("s_barrier")
    for w in range(4):
        for q in range(4):
            a(f"ds_read_b128 {vr(ACC + w * 16 + q * 4, 4)}, v{VRD} offset:{w * 16384 + q * 1024}")
        if w == 2:
            a("s_waitcnt lgkmcnt(4)")
            for p in range(8):
                a(f"v_pk_add_f32 {vr(H + 2 * p, 2)}, {vr(ACC + 2 * p, 2)}, {vr(ACC + 16 + 2 * p, 2)}")
    a("s_waitcnt lgkmcnt(0)")
    for p in range(8):
        a(f"v_pk_add_f32 {vr(ACC + 32 + 2 * p, 2)}, {vr(ACC + 32 + 2 * p, 2)}, {vr(ACC + 48 + 2 * p, 2)}")
    for p in range(8):
        a(f"v_pk_add_f32 {vr(H + 2 * p, 2)}, {vr(H + 2 * p, 2)}, {vr(ACC + 32 + 2 * p, 2)}")
    for p in range(8):
        a(f"v_cvt_pk_bf16_f32 v{ACC + p}, v{H + 2 * p}, v{H + 2 * p + 1}")
    a("s_nop 1")
    for pr in range(2):
        a(f"v_permlane32_swap_b32 v{ACC + 4 * pr}, v{ACC + 4 * pr + 2}")
        a(f"v_permlane32_swap_b32 v{ACC + 4 * pr + 1}, v{ACC + 4 * pr + 3}")
    for pr in range(2):
        a(f"buffer_store_dwordx4 {vr(ACC + 4 * pr, 4)}, v{VO}, s[32:35], s63 offen offset:{32 * pr}")
    stamp_flush(a)
    a("s_endpgm")

    a.label("L_LOADER")
    a.vm = list(vm_at_split)
    a(f"""
    v_and_b32 v3, 1, v1
    v_lshlrev_b32 v3, 3, v3
    s_add_u32 s61, s58, {WS_FG}
    """)
    kv(2)
    a.vwait("q")
    a("s_barrier")
    for i in range(7):
        if i >= 1 and i + 2 <= 7:
            kv(i + 2)
        if i == 2:
            poll(a, 3, 61, 16)
        a.vwait(f"kv{i + 1}")
        a("s_barrier")
    stamp_flush(a)
    a.label("L_END")
    a("s_endpgm")


def chunk_order():
    if OPT.get("first0", 1):
        n, seq, lead = 6, 0x654321654321, 1
    else:
        n, seq, lead = 7, 0x65432106543210, 0
    L = f"""
    s_lshr_b32 s68, s48, 3
    s_mul_i32 s68, s68, {OPT.get("rotc", 2)}
    s_and_b32 s3, s48, {OPT.get("rotm", 7)}
    s_add_u32 s68, s68, s3
    s_sub_u32 s3, s68, {n}
    s_cmp_ge_u32 s68, {n}
    s_cselect_b32 s68, s3, s68
    s_sub_u32 s3, s68, {n}
    s_cmp_ge_u32 s68, {n}
    s_cselect_b32 s68, s3, s68
    s_lshl_b32 s3, s68, 2
    s_mov_b32 s68, {seq & 0xffffffff:#x}
    s_mov_b32 s69, {seq >> 32:#x}
    s_lshr_b64 s[68:69], s[68:69], s3
    s_lshl_b32 s68, s68, {4 * lead}
    """
    return "".join("    " + l.strip() + "\n" for l in L.strip().split("\n"))


def main():
    global DIAG
    DIAG = os.environ.get("DIAG", "0") == "1"
    for kvp in os.environ.get("OPT", "").split(","):
        if kvp:
            k, _, v = kvp.partition("=")
            OPT[k] = int(v) if v else 1
    ref = open(f"cdna_kernels/{NAME}.s.ref").read().split("\n")
    head = [l for l in ref if l.startswith(";") and "@launch" not in l]
    a = Asm()
    for l in head:
        a.raw(l)
    a.raw("; @launch grid=(256,1,1) block=(768,1,1) lds=163840")
    a.raw('.amdgcn_target "amdgcn-amd-amdhsa--gfx950"')
    a.raw(".text")
    kn = NAME + "_kernel"
    a.raw(f".globl {kn}")
    a.raw(".p2align 8")
    a.raw(f".type {kn},@function")
    a.label(kn)
    gen_prologue(a)
    gen_p1_compute(a)
    gen_attention(a)
    gen_aux(a)
    a.raw('.section .rodata,"a"')
    out = a.text().replace("    CHUNKORDER\n", chunk_order()) + f""".p2align 6
.amdhsa_kernel {kn}
  .amdhsa_next_free_vgpr 168
  .amdhsa_next_free_sgpr 102
  .amdhsa_accum_offset 168
  .amdhsa_group_segment_fixed_size 0
  .amdhsa_kernarg_size 88
  .amdhsa_user_sgpr_count 2
  .amdhsa_user_sgpr_kernarg_segment_ptr 1
  .amdhsa_system_sgpr_workgroup_id_x 1
.end_amdhsa_kernel
"""
    path = sys.argv[1] if len(sys.argv) > 1 else f"cdna_kernels/{NAME}.s"
    open(path, "w").write(out)


if __name__ == "__main__":
    main()
```

```python
import math
import os
import struct
import sys

NAME = "gated_mix__mha_block__geglu_ffn__prompt"

WS_Q = 0
WS_KV = 2 << 20
WS_H = 6 << 20
WS_O = 14 << 20
WS_G = 20 << 20
WS_F = 21 << 20
FS = 4352
WS_FKV = WS_F
WS_FQ = WS_F + 64 * FS
WS_FG = WS_F + 80 * FS
WS_FH = WS_F + 112 * FS
WS_FO = WS_F + 240 * FS
WS_D = 23 << 20
WS_SIZE = 24 << 20

X_BYTES = 2048 * 448 * 2
WQKV_BYTES = 448 * 1344 * 2
WG_BYTES = 448 * 1792 * 2
WD_BYTES = 1792 * 448 * 2
WO_BYTES = 448 * 448 * 2
GW_BYTES = 448 * 2

BLK = 16384
FB = 7 * BLK
L_NONCE = 0
W_BLK = [8, 9, 7, 8, 9, 0, 7, 8, 1, 9, 2, 7, 8, 3]
W_ISSUE = [-2, -1, 0, 1, 2, 2, 3, 4, 4, 5, 6, 7, 8, 8]
P2_BARS = [0, 1, 2, 3, 4, 5, 6, 7, 8, 10, 14]
RING = 98304

DIAG = False
OPT = {}

WS = "s[28:31]"
NONCE_V = 164
HP = 144


def f2u(x):
    return struct.unpack("<I", struct.pack("<f", x))[0]


class Asm:
    def __init__(self):
        self.L = []
        self.vm = []
        self.nlab = 0

    def __call__(self, s):
        for line in s.strip("\n").split("\n"):
            if line.strip():
                self.L.append("    " + line.strip())

    def label(self, s):
        self.L.append(s + ":")

    def raw(self, s):
        self.L.append(s)

    def text(self):
        return "\n".join(self.L) + "\n"

    def newlabel(self, p):
        self.nlab += 1
        return f"{p}_{self.nlab}"

    def vmem(self, s, tag):
        self(s)
        self.vm.append(tag)

    def vwait(self, *tags):
        last = -1
        for i, t in enumerate(self.vm):
            if t in tags:
                last = i
        if last < 0:
            return
        n = len(self.vm) - 1 - last
        assert n <= 63
        self(f"s_waitcnt vmcnt({n})")
        self.vm = self.vm[last + 1:]

    def vreset(self):
        self.vm = []


def vr(b, n):
    return f"v[{b}:{b + n - 1}]"


def stamp(a, i, real=False, grp=0):
    if DIAG and (grp == OPT.get("grp", 0) or i in (0, 1, 14, 15)):
        a(f"{'s_memrealtime' if real else 's_memtime'} s[{70 + 2 * i}:{71 + 2 * i}]")


def stamp2(a, i):
    stamp(a, i, grp=5)
    stamp(a, i + 1, True, grp=5)


def stamp_flush(a):
    if not DIAG:
        return
    stamp(a, 14)
    stamp(a, 15, True)
    a("s_waitcnt lgkmcnt(0)")
    a("s_mov_b64 exec, 1")
    for i in range(16):
        a(f"v_mov_b32 v{16 + i}, s{70 + 2 * i}")
    a("s_lshl_b32 s68, s2, 4")
    a("s_add_u32 s68, s68, s26")
    a("s_lshl_b32 s68, s68, 6")
    a(f"s_add_u32 s68, s68, {WS_D}")
    for q in range(4):
        a(f"buffer_store_dwordx4 {vr(16 + 4 * q, 4)}, off, {WS}, s68 offset:{16 * q}")
    if OPT.get("dbg"):
        sk = a.newlabel("DBG")
        a("v_not_b32 v40, v17")
        a("v_mov_b32 v41, 0")
        a("global_atomic_umax v41, v40, s[22:23] offset:8")
        a("global_atomic_umax v41, v17, s[22:23] offset:12")
        a("global_atomic_umax v41, v31, s[22:23] offset:16")
        a("s_lshl_b32 s3, s2, 4")
        a("s_add_u32 s3, s3, s26")
        a(f"s_cmp_lg_u32 s3, {OPT['dbg'] * 16}")
        a(f"s_cbranch_scc1 {sk}")
        for n, i in enumerate((1, 3, 5, 7, 9, 11, 15)):
            a(f"global_store_dword v41, v{16 + i}, s[22:23] offset:{20 + 4 * n}")
        a("v_sub_u32 v42, v30, v16")
        a("global_store_dword v41, v42, s[22:23] offset:48")
        a.label(sk)


def srd(a, d, lo, nbytes):
    a(f"s_mov_b32 s{d}, s{lo}")
    a(f"s_and_b32 s{d + 1}, s{lo + 1}, 0xffff")
    a(f"s_mov_b32 s{d + 2}, {nbytes}")
    a(f"s_mov_b32 s{d + 3}, 0x20000")


def mfma(a, d, x, y, c):
    cs = "0" if c is None else vr(c, 16)
    a(f"v_mfma_f32_32x32x16_bf16 {vr(d, 16)}, {vr(x, 4)}, {vr(y, 4)}, {cs}")


def flag_store(a, sregs):
    a("s_mov_b64 exec, 1")
    for s in sregs:
        a.vmem(f"buffer_store_dwordx2 {vr(NONCE_V, 2)}, off, {WS}, s{s} sc1", "flag")
    a("s_mov_b64 exec, -1")


def make_tag(a, vdst, vtmp):
    a(f"""
    v_and_b32 v{vtmp}, 2, v1
    v_cmp_eq_u32 vcc, 0, v{vtmp}
    v_and_b32 v{vtmp}, 1, v1
    v_lshlrev_b32 v{vtmp}, 4, v{vtmp}
    v_cndmask_b32 v{vdst}, v{NONCE_V + 1}, v{NONCE_V}, vcc
    v_lshlrev_b32 v{vdst}, v{vtmp}, v{vdst}
    v_and_b32 v{vdst}, 0xffff0000, v{vdst}
    """)


def nonce_check(a, vzero):
    lp, dn = a.newlabel("NLOOP"), a.newlabel("NDONE")
    a("s_mov_b32 s69, 0x40000")
    a.label(lp)
    a(f"""
    v_cmp_ne_u32 vcc, 0, v{NONCE_V}
    s_sub_u32 s69, s69, 1
    s_cbranch_scc1 {dn}
    s_cbranch_vccnz {dn}
    global_load_dwordx2 {vr(NONCE_V, 2)}, v{vzero}, s[22:23] sc1
    s_waitcnt vmcnt(0)
    s_branch {lp}
    """)
    a.label(dn)


def poll(a, vaddr, soff, vtmp):
    lp, dn = a.newlabel("POLL"), a.newlabel("POLLD")
    a("s_mov_b32 s69, 0x40000")
    a.label(lp)
    a(f"buffer_load_dwordx2 {vr(vtmp, 2)}, v{vaddr}, {WS}, s{soff} offen sc1")
    a("s_waitcnt vmcnt(0)")
    a(f"v_cmp_eq_u64 vcc, s[50:51], {vr(vtmp, 2)}")
    a("s_sub_u32 s69, s69, 1")
    a(f"s_cbranch_scc1 {dn}")
    a("s_cmp_eq_u64 vcc, -1")
    a(f"s_cbranch_scc1 {dn}")
    a(f"s_sleep {OPT.get('sleep', 4)}")
    a(f"s_branch {lp}")
    a.label(dn)
    a.vreset()


def gen_prologue(a):
    a("""
    s_cmp_ge_u32 s2, 256
    s_cbranch_scc1 L_END
    """)
    stamp(a, 0)
    stamp(a, 1, True)
    a("""
    s_load_dwordx16 s[4:19], s[0:1], 0
    s_load_dwordx4 s[20:23], s[0:1], 64
    s_load_dwordx2 s[24:25], s[0:1], 80
    v_lshrrev_b32 v2, 6, v0
    v_and_b32 v1, 63, v0
    s_and_b32 s27, s2, 7
    v_readfirstlane_b32 s26, v2
    s_lshr_b32 s48, s2, 3
    s_and_b32 s56, s48, 7
    s_lshr_b32 s3, s27, 2
    s_lshl_b32 s3, s3, 3
    s_add_u32 s56, s56, s3
    s_lshr_b32 s57, s48, 3
    s_and_b32 s3, s27, 3
    s_lshl_b32 s3, s3, 2
    s_add_u32 s57, s57, s3
    s_cmp_ge_u32 s57, 14
    s_cselect_b32 s58, 1, 0
    s_mul_i32 s59, s57, 3
    v_lshlrev_b32 v9, 4, v1
    s_mov_b32 s52, 0
    s_mov_b32 s53, -1
    s_cmp_ge_u32 s26, 8
    s_cbranch_scc1 L_AUX
    """)


def gen_p1_compute(a):
    VXR, VT1, VT2 = 10, 18, 19
    XF, WF, AC1, AC2 = 24, 40, 56, 80
    NV = 150
    a(f"""
    s_and_b32 s49, s26, 3
    s_lshr_b32 s62, s26, 2
    s_lshl_b32 s61, s49, 12
    v_and_b32 v2, 31, v1
    v_lshrrev_b32 v3, 5, v1
    v_bfe_u32 v4, v1, 1, 3
    v_lshlrev_b32 v5, 7, v2
    v_add_u32 v5, s61, v5
    v_cmp_eq_u32 s[54:55], 28, v2
    v_cmp_le_u32 s[46:47], 28, v2
    """)
    for s in range(4):
        a(f"v_add_u32 v6, {2 * s}, v3")
        a("v_xor_b32 v6, v6, v4")
        a(f"v_lshl_add_u32 v{VXR + s}, v6, 4, v5")
        a(f"v_add_u32 v{VXR + 4 + s}, 65536, v{VXR + s}")
    a(f"""
    v_bfe_u32 v4, v1, 4, 1
    v_bfe_u32 v5, v1, 2, 2
    v_and_b32 v6, 3, v1
    v_lshlrev_b32 v6, 3, v6
    v_lshl_add_u32 v8, v3, 9, v6
    v_lshl_add_u32 v8, v5, 6, v8
    v_lshl_add_u32 v8, v4, 5, v8
    s_lshl_b32 s61, s62, 13
    s_add_u32 s61, s61, {FB}
    v_add_u32 v{VT1}, s61, v8
    v_lshl_add_u32 v7, v3, 10, v6
    v_lshl_add_u32 v7, v5, 7, v7
    v_lshl_add_u32 v7, v4, 13, v7
    s_lshl_b32 s61, s62, 12
    v_add_u32 v7, s61, v7
    v_and_b32 v5, 2, v5
    v_xor_b32 v5, v5, v4
    s_and_b32 s63, s26, 2
    v_xor_b32 v5, s63, v5
    v_lshl_add_u32 v{VT2}, v5, 5, v7
    v_xor_b32 v5, 1, v5
    v_lshl_add_u32 v{VT2 + 1}, v5, 5, v7
    v_add_u32 v{VT2 + 2}, {FB}, v{VT2}
    v_add_u32 v{VT2 + 3}, {FB}, v{VT2 + 1}
    s_waitcnt lgkmcnt(0)
    """)
    srd(a, 28, 24, WS_SIZE)
    sk = a.newlabel("NSKIP")
    a(f"""
    v_mov_b32 v{NV + 2}, 0
    s_lshl_b32 s3, s2, 4
    s_add_u32 s3, s3, s26
    s_cmp_lg_u32 s3, 7
    s_cbranch_scc1 {sk}
    s_memrealtime s[50:51]
    s_waitcnt lgkmcnt(0)
    s_mul_i32 s44, s51, 0x7f4a7c15
    s_mul_i32 s45, s50, 0x9e3779b9
    s_mul_hi_u32 s51, s50, 0x7f4a7c15
    s_mul_i32 s50, s50, 0x7f4a7c15
    s_add_u32 s51, s51, s44
    s_add_u32 s51, s51, s45
    s_xor_b32 s50, s50, s51
    s_or_b32 s50, s50, 1
    v_mov_b32 v{NV + 4}, s50
    v_mov_b32 v{NV + 5}, s51
    s_mov_b64 exec, 1
    global_store_dwordx2 v{NV + 2}, {vr(NV + 4, 2)}, s[22:23] sc0 sc1
    s_mov_b64 exec, -1
    """)
    a.label(sk)
    qscale = math.log2(math.e) / math.sqrt(28.0)
    a("""
    s_lshl_b32 s60, s62, 1
    s_add_u32 s60, s60, s59
    s_lshl_b32 s64, s56, 2
    s_add_u32 s64, s64, s49
    s_and_b32 s43, s26, 1
    s_lshl_b32 s43, s43, 13
    s_lshl_b32 s61, s49, 12
    s_sub_u32 s43, s43, s61
    """)
    a("""
    v_and_b32 v2, 31, v1
    v_cmp_lt_u32 vcc, 10, v2
    v_mov_b32 v3, v2
    v_lshrrev_b32 v5, 5, v1
    v_addc_co_u32 v3, vcc, 0, v3, vcc
    v_cmp_lt_u32 vcc, 13, v2
    v_and_b32 v6, 1, v2
    v_and_b32 v7, 2, v2
    v_addc_co_u32 v3, vcc, 0, v3, vcc
    v_cmp_lt_u32 vcc, 24, v2
    v_lshlrev_b32 v6, 2, v6
    v_lshl_add_u32 v6, v7, 3, v6
    v_addc_co_u32 v3, vcc, 0, v3, vcc
    v_add_u32 v6, 11, v6
    v_cmp_lt_u32 vcc, 27, v2
    s_nop 1
    v_cndmask_b32 v3, v3, v6, vcc
    v_lshl_add_u32 v3, v5, 5, v3
    v_lshlrev_b32 v3, 4, v3
    s_cmp_ge_u32 s60, 32
    s_cselect_b64 vcc, -1, 0
    s_nop 0
    v_cndmask_b32 v23, v9, v3, vcc
    """)
    def ft_addr(dst, j):
        a(f"s_add_u32 s66, s60, {j}")
        a(f"s_mul_i32 s44, s66, {FS}")
        a("s_lshl_b32 s3, s64, 3")
        a("s_add_u32 s44, s44, s3")
        a(f"s_add_u32 s44, s44, {WS_FQ}")
        a("s_and_b32 s45, s66, 15")
        a("s_lshl_b32 s45, s45, 2")
        a("s_bfe_u32 s3, s64, 0x20001")
        a("s_add_u32 s45, s45, s3")
        a(f"s_mul_i32 s45, s45, {FS}")
        a("s_lshr_b32 s3, s66, 5")
        a("s_lshl_b32 s3, s3, 3")
        a("s_lshr_b32 s61, s64, 3")
        a("s_add_u32 s3, s3, s61")
        a("s_lshl_b32 s3, s3, 1")
        a("s_and_b32 s61, s64, 1")
        a("s_add_u32 s3, s3, s61")
        a("s_lshl_b32 s3, s3, 3")
        a("s_add_u32 s45, s45, s3")
        a(f"s_add_u32 s45, s45, {WS_FKV}")
        a("s_cmp_lt_u32 s66, 16")
        a(f"s_cselect_b32 s{dst}, s44, s45")

    for j in range(2):
        ft_addr(40 + j, j)
        a("s_and_b32 s61, s66, 15")
        a("s_lshl_b32 s61, s61, 6")
        a("s_add_u32 s61, s61, s64")
        a("s_cmp_lt_u32 s66, 16")
        a(f"s_cselect_b32 s{32 + 2 * j}, {f2u(qscale):#x}, 1.0")
        a(f"s_mov_b32 s{33 + 2 * j}, s{32 + 2 * j}")
        a(f"s_cselect_b32 s{36 + j}, 0, 0x3f80")
        a("s_cselect_b32 s3, 11, 12")
        a(f"s_cselect_b32 s44, {WS_Q}, {WS_KV}")
        a("s_lshl_b32 s61, s61, s3")
        a(f"s_add_u32 s{38 + j}, s61, s44")
    a("""
    s_cmp_ge_u32 s26, 4
    s_cselect_b32 s41, s40, s41
    s_cbranch_scc1 P1_Y
    s_cmp_ge_u32 s60, 32
    s_cbranch_scc1 P1_XV
    """)

    def xaddr(c, s):
        return (VXR + s, c * BLK) if c < 4 else (VXR + 4 + s, c * BLK - 65536)

    def reads2(k):
        c, s = divmod(k, 4)
        b = k % 2
        reg, off = xaddr(c, s)
        for r in range(2):
            a(f"ds_read_b128 {vr(XF + b * 8 + r * 4, 4)}, v{reg} offset:{off + r * 4096}")
        blk = W_BLK[k // 2]
        base, o = (VT2, blk * BLK) if blk < 4 else (VT2 + 2, blk * BLK - FB)
        o += (k % 2) * 2048
        for j in range(2):
            d = WF + b * 8 + j * 4
            a(f"ds_read_b64_tr_b16 {vr(d, 2)}, v{base + j} offset:{o}")
            a(f"ds_read_b64_tr_b16 {vr(d + 2, 2)}, v{base + j} offset:{o + 512}")

    def reads1(k, ns):
        c, s = divmod(k, 4)
        b = k % 2
        reg, off = xaddr(c, s)
        a(f"ds_read_b128 {vr(XF + b * 8, 4)}, v{reg} offset:{off}")
        for j in range(ns):
            d = WF + b * 8 + j * 4
            o = (c % 3) * BLK + j * 4096 + s * 1024
            a(f"ds_read_b64_tr_b16 {vr(d, 2)}, v{VT1} offset:{o}")
            a(f"ds_read_b64_tr_b16 {vr(d + 2, 2)}, v{VT1} offset:{o + 256}")

    def pass1(ns, swap):
        stamp(a, 2)
        a("s_barrier")
        stamp(a, 3)
        stamp(a, 3, grp=3)
        stamp2(a, 2)
        reads1(0, ns)
        for k in range(28):
            a("s_waitcnt lgkmcnt(0)")
            if (k + 1) % 4 == 0 and k + 1 < 28:
                a("s_barrier")
                stamp(a, 3 + (k + 1) // 4, grp=3)
            if k + 1 < 28:
                reads1(k + 1, ns)
            b = k % 2
            for j in range(ns):
                d = AC1 + j * 16
                w, x = WF + b * 8 + j * 4, XF + b * 8
                if swap:
                    mfma(a, d, x, w, None if k == 0 else d)
                else:
                    mfma(a, d, w, x, None if k == 0 else d)

    T = HP

    def epi_qk(d, j):
        sc = 32 + 2 * j
        for p in range(16):
            a(f"v_mul_f32 v{d + p}, s{sc}, v{d + p}")
        a(f"v_mov_b32 v{T}, s{36 + j}")
        for p in range(8):
            a(f"v_cvt_pk_bf16_f32 v{d + p}, v{d + 2 * p}, v{d + 2 * p + 1}")
        a(f"v_cndmask_b32 v{d + 6}, v{d + 6}, v{T}, s[52:53]")
        a(f"v_cndmask_b32 v{d + 7}, v{d + 7}, 0, s[52:53]")

    def epi_v(d, j):
        a(f"v_mov_b32 v{T}, 0x3f803f80")
        a(f"v_cndmask_b32 v{T}, 0, v{T}, s[54:55]")
        for p in range(8):
            a(f"v_cvt_pk_bf16_f32 v{d + p}, v{d + 2 * p}, v{d + 2 * p + 1}")
        for p in range(8):
            a(f"v_cndmask_b32 v{d + p}, v{d + p}, v{T}, s[46:47]")
        a(f"s_add_u32 s{38 + j}, s{38 + j}, 2048")

    def mid(ywave):
        a(f"global_load_dwordx2 {vr(NONCE_V, 2)}, v{NV + 2}, s[22:23] sc1")
        a("s_barrier")
        stamp(a, 4)
        stamp(a, 10, grp=3)
        stamp2(a, 4)
        for i in range(8):
            a(f"v_add_u32 v{VXR + i}, s43, v{VXR + i}")
        reads2(0)

    for lab, ns, swap in (("P1_XN", 2, False), ("P1_XV", 2, True), ("P1_YN", 1, False), ("P1_YV", 1, True)):
        if lab == "P1_YN":
            a.label("P1_Y")
            a("s_cmp_ge_u32 s60, 32")
            a("s_cbranch_scc1 P1_YV")
        a.label(lab)
        pass1(ns, swap)
        mid(ns == 1)
        for j in range(ns):
            (epi_v if swap else epi_qk)(AC1 + j * 16, j)
        if lab != "P1_YV":
            a("s_branch P2_START")
    a.label("P2_START")

    a("s_cmp_eq_u32 s58, 1")
    a("s_cbranch_scc1 P2_IDLE")

    def qkv_store(n):
        j, hf = divmod(n, 2)
        if j:
            sk = a.newlabel("YSKIP")
            a("s_cmp_ge_u32 s26, 4")
            a(f"s_cbranch_scc1 {sk}")
        a(f"buffer_store_dwordx4 {vr(AC1 + j * 16 + hf * 4, 4)}, v23, {WS}, s{38 + j} offen offset:{hf * 1024} sc1")
        if j:
            a.label(sk)

    def hooks(j):
        if j == OPT.get("fb", 6):
            a("s_waitcnt vmcnt(0)")
            nonce_check(a, NV + 2)
            flag_store(a, [40, 41])
            a.vreset()

    for k in range(28):
        a("s_waitcnt lgkmcnt(0)")
        bar = (k + 1) % 2 == 0 and (k + 1) // 2 in P2_BARS[:-1]
        if bar:
            a("s_barrier")
            if (k + 1) // 2 <= 12:
                stamp(a, 1 + (k + 1) // 2, grp=1)
            if k + 1 == 28:
                stamp(a, 5)
        b = k % 2
        n0 = len(a.L)
        if k + 1 < 28:
            reads2(k + 1)
        rd = a.L[n0:]
        del a.L[n0:]
        n = 0
        for j in range(2):
            for r in range(2):
                d = AC2 + (j * 2 + r) * 16
                mfma(a, d, WF + b * 8 + j * 4, XF + b * 8 + r * 4, None if k == 0 else d)
                if n < 2:
                    a.L.extend(rd[3 * n:3 * n + 3])
                n += 1
        qs = OPT.get("qs", 2)
        if k % 2 == 0 and qs <= k < qs + 8:
            qkv_store((k - qs) // 2)
        if bar:
            hooks((k + 1) // 2)
        if k == 19 and OPT.get("xprio", 1):
            a("s_sub_u32 s3, 1, s62")
            a("s_cbranch_scc1 P2_NOPRIO")
            a("s_cmp_eq_u32 s62, 1")
            a("s_cbranch_scc1 P2_NOPRIO")
            a("s_setprio 2")
            a.label("P2_NOPRIO")
    stamp(a, 6)
    stamp2(a, 6)
    VC3, VC1, VONE = 10, 12, 14
    c1 = -2.0 * math.log2(math.e) * math.sqrt(2.0 / math.pi)
    c3 = c1 * 0.044715
    a(f"""
    s_lshl_b32 s65, s56, 1
    s_and_b32 s3, s26, 1
    s_add_u32 s65, s65, s3
    s_lshl_b32 s63, s57, 2
    s_lshr_b32 s3, s26, 1
    s_add_u32 s63, s63, s3
    s_mul_i32 s40, s65, 112
    s_add_u32 s40, s40, s63
    s_lshl_b32 s40, s40, 11
    s_add_u32 s40, s40, {WS_H}
    s_add_u32 s42, s40, {112 * 1024}
    s_mul_i32 s44, s63, 37
    s_lshr_b32 s44, s44, 9
    s_mul_i32 s45, s44, 14
    s_sub_u32 s45, s63, s45
    s_lshl_b32 s59, s65, 2
    s_add_u32 s59, s59, s44
    s_mul_i32 s59, s59, {FS}
    s_lshl_b32 s45, s45, 3
    s_add_u32 s59, s59, s45
    s_add_u32 s59, s59, {WS_FH}
    v_mov_b32 v{VC3}, {f2u(c3):#x}
    v_mov_b32 v{VC3 + 1}, {f2u(c3):#x}
    v_mov_b32 v{VC1}, {f2u(c1):#x}
    v_mov_b32 v{VC1 + 1}, {f2u(c1):#x}
    v_mov_b32 v{VONE}, 1.0
    v_mov_b32 v{VONE + 1}, 1.0
    """)
    T2 = XF

    def epi_ffn(d, r, j, packed):
        T = T2
        o = HP + (r * 2 + j) * 4
        if packed:
            for p in range(4):
                a(f"v_pk_mul_f32 {vr(T + 2 * p, 2)}, {vr(d + 2 * p, 2)}, {vr(d + 2 * p, 2)}")
            for p in range(4):
                a(f"v_pk_fma_f32 {vr(T + 2 * p, 2)}, {vr(T + 2 * p, 2)}, {vr(VC3, 2)}, {vr(VC1, 2)}")
            for p in range(4):
                a(f"v_pk_mul_f32 {vr(T + 2 * p, 2)}, {vr(T + 2 * p, 2)}, {vr(d + 2 * p, 2)}")
        else:
            for p in range(8):
                a(f"v_mul_f32 v{T + p}, v{d + p}, v{d + p}")
            for p in range(8):
                a(f"v_fma_f32 v{T + p}, v{T + p}, v{VC3}, v{VC1}")
            for p in range(8):
                a(f"v_mul_f32 v{T + p}, v{T + p}, v{d + p}")
        for p in range(8):
            a(f"v_exp_f32 v{T + p}, v{T + p}")
        if packed:
            for p in range(4):
                a(f"v_pk_mul_f32 {vr(T + 8 + 2 * p, 2)}, {vr(d + 2 * p, 2)}, {vr(d + 8 + 2 * p, 2)}")
            for p in range(4):
                a(f"v_pk_add_f32 {vr(T + 2 * p, 2)}, {vr(T + 2 * p, 2)}, {vr(VONE, 2)}")
        else:
            for p in range(8):
                a(f"v_mul_f32 v{T + 8 + p}, v{d + p}, v{d + 8 + p}")
            for p in range(8):
                a(f"v_add_f32 v{T + p}, 1.0, v{T + p}")
        for p in range(8):
            a(f"v_rcp_f32 v{T + p}, v{T + p}")
        a("s_nop 0")
        if packed:
            for p in range(4):
                a(f"v_pk_mul_f32 {vr(T + 2 * p, 2)}, {vr(T + 2 * p, 2)}, {vr(T + 8 + 2 * p, 2)}")
        else:
            for p in range(8):
                a(f"v_mul_f32 v{T + p}, v{T + p}, v{T + 8 + p}")
        for p in range(4):
            a(f"v_cvt_pk_bf16_f32 v{o + p}, v{T + 2 * p}, v{T + 2 * p + 1}")

    tiles = [(j, r) for j in range(2) for r in range(2)]
    a("s_cmp_eq_u32 s62, 1")
    a("s_cbranch_scc1 P2_GELY")
    a("s_setprio 0")
    xb = OPT.get("xb", 2)
    for n, (j, r) in enumerate(tiles):
        epi_ffn(AC2 + (j * 2 + r) * 16, r, j, n > xb)
        if n == xb:
            a("s_barrier")
    if OPT.get("xstore", 1):
        for j, r in tiles:
            a(f"buffer_store_dwordx4 {vr(HP + (r * 2 + j) * 4, 4)}, v9, {WS}, s{40 + 2 * r} offen offset:{j * 1024} sc1")
    a("s_branch P1_DONE")
    a.label("P2_GELY")
    yb = OPT.get("yb", 0)
    if yb < 0:
        a("s_barrier")
    for n, (j, r) in enumerate(tiles):
        epi_ffn(AC2 + (j * 2 + r) * 16, r, j, True)
        if n == yb:
            a("s_barrier")
    a("s_branch P1_DONE")
    a.label("P2_IDLE")
    for n in range(4):
        qkv_store(n)
    hooks(OPT.get("fb", 6))
    a("s_waitcnt lgkmcnt(0)")
    a("s_cmp_lt_u32 s26, 2")
    a("s_cbranch_scc1 P2_GATE")
    srd(a, 32, 16, WD_BYTES)
    srd(a, 44, 8, WO_BYTES)
    a(f"""
    s_lshl_b32 s3, s56, 1
    s_and_b32 s61, s57, 1
    s_add_u32 s3, s3, s61
    s_mul_i32 s3, s3, 6
    s_add_u32 s3, s3, s26
    s_sub_u32 s3, s3, 2
    v_lshlrev_b32 v3, 7, v1
    s_mul_i32 s61, s3, {66 * 128}
    s_mul_i32 s3, s3, {17 * 128}
    buffer_load_dword v4, v3, s[32:35], s61 offen
    s_mov_b64 exec, 0x1ffff
    buffer_load_dword v5, v3, s[44:47], s3 offen
    s_add_u32 s61, s61, {64 * 128}
    s_mov_b64 exec, 3
    buffer_load_dword v6, v3, s[32:35], s61 offen
    s_mov_b64 exec, -1
    s_branch P2_IDLE2
    """)
    a.label("P2_GATE")
    srd(a, 32, 18, GW_BYTES)
    a(f"""
    v_lshrrev_b32 v3, 5, v1
    v_lshlrev_b32 v3, 4, v3
    s_and_b32 s3, s57, 1
    s_lshl_b32 s61, s3, 13
    s_lshl_b32 s44, s26, 12
    s_sub_u32 s61, s61, s44
    s_lshl_b32 s65, s56, 1
    s_add_u32 s65, s65, s3
    """)
    for i in range(8):
        a(f"v_add_u32 v{VXR + i}, s61, v{VXR + i}")
    GA = 24
    a("""
CHUNKORDER
    """)
    for half in range(2):
        for kk in range(14):
            k = half * 14 + kk
            if k % 4 == 0:
                a(f"s_bfe_u32 s37, s68, {0x40000 + k:#x}")
                a("s_lshl_b32 s37, s37, 7")
            a(f"buffer_load_dwordx4 {vr(AC2 + 4 * kk, 4)}, v3, s[32:35], s37 offen offset:{(k % 4) * 32}")
        a("s_waitcnt vmcnt(0)")
        for kk in range(14):
            k = half * 14 + kk
            reg, off = xaddr(k // 4, k % 4)
            a(f"ds_read_b128 {vr(WF + (k % 2) * 4, 4)}, v{reg} offset:{off}")
            a("s_waitcnt lgkmcnt(0)")
            mfma(a, GA, AC2 + 4 * kk, WF + (k % 2) * 4, None if k == 0 else GA)
    a(f"""
    s_lshl_b32 s44, s65, 8
    s_lshl_b32 s3, s26, 7
    s_add_u32 s44, s44, s3
    s_add_u32 s44, s44, {WS_G}
    s_mul_i32 s42, s65, {FS}
    s_lshl_b32 s3, s26, 3
    s_add_u32 s42, s42, s3
    s_add_u32 s42, s42, {WS_FG}
    v_lshlrev_b32 v3, 2, v1
    s_nop 7
    v_mul_f32 v5, {f2u(-math.log2(math.e)):#x}, v{GA}
    v_exp_f32 v5, v5
    s_nop 0
    v_add_f32 v5, 1.0, v5
    v_rcp_f32 v5, v5
    s_mov_b64 exec, 0xffffffff
    s_nop 0
    buffer_store_dword v5, v3, {WS}, s44 offen sc1
    s_mov_b64 exec, -1
    """)
    a("s_waitcnt vmcnt(0)")
    flag_store(a, [42])
    a.label("P2_IDLE2")
    for j in P2_BARS[1:]:
        a("s_barrier")
    a.label("P1_DONE")
    a.vreset()
    stamp(a, 7)


def gen_attention(a):
    VCUR, VNEXT, VBASE = 2, 3, 4
    Q, K, V, S, P, O, T = 10, 18, 34, 66, 98, 106, 122
    VG = 140
    a(f"""
    s_lshr_b32 s60, s48, 4
    s_lshl_b32 s3, s27, 1
    s_add_u32 s60, s60, s3
    s_and_b32 s61, s48, 15
    s_lshl_b32 s61, s61, 2
    s_add_u32 s61, s61, s49
    s_lshl_b32 s38, s60, 18
    s_add_u32 s38, s38, {WS_KV}
    s_lshl_b32 s41, s61, 7
    s_add_u32 s41, s41, {WS_G}
    v_and_b32 v6, 31, v1
    v_lshlrev_b32 v6, 2, v6
    s_lshl_b32 s3, s49, 11
    s_add_u32 s3, s3, {4 * BLK}
    v_add_u32 v5, s3, v9
    s_lshl_b32 s43, s62, 12
    v_add_u32 v{VBASE}, s43, v9
    v_mov_b32 v{VCUR}, v{VBASE}
    v_add_u32 v{VNEXT}, 32768, v{VBASE}
    s_mov_b32 s46, 32768
    s_mov_b32 s47, 8
    s_movk_i32 s63, 0x184
    s_cmp_eq_u32 s58, 1
    s_cselect_b32 s63, 4, s63
    """)
    for r in range(16):
        a(f"v_mov_b32 v{O + r}, 0")
    make_tag(a, 7, 8)
    stamp(a, 8)
    a(f"""
    ds_read_b128 {vr(Q, 4)}, v5
    ds_read_b128 {vr(Q + 4, 4)}, v5 offset:1024
    ds_read_b128 {vr(V + 24, 4)}, v9
    ds_read_b128 {vr(V + 28, 4)}, v9 offset:1024
    """)
    for t in range(2):
        for j in range(2):
            a(f"ds_read_b128 {vr(K + t * 8 + j * 4, 4)}, v{VCUR} offset:{t * 8192 + j * 1024}")
        for j in range(2):
            a(f"ds_read_b128 {vr(V + t * 8 + j * 4, 4)}, v{VCUR} offset:{t * 8192 + 2048 + j * 1024}")
    a("s_waitcnt lgkmcnt(0)" if DIAG else "s_waitcnt lgkmcnt(8)")
    mfma(a, S + 16, V + 24, Q, None)
    mfma(a, S + 16, V + 28, Q + 4, S + 16)
    a("s_nop 15")

    def rowmax(src, dst):
        a(f"v_max3_f32 v{dst}, v{src}, v{src + 1}, v{src + 2}")
        for r in range(3, 15, 2):
            a(f"v_max3_f32 v{dst}, v{dst}, v{src + r}, v{src + r + 1}")
        a(f"v_max_f32 v{dst}, v{dst}, v{src + 15}")

    def crossmax(dst, tmp):
        a(f"v_mov_b32 v{tmp}, v{dst}")
        a("s_nop 1")
        a(f"v_permlane32_swap_b32 v{dst}, v{tmp}")
        a("s_nop 1")
        a(f"v_max_f32 v{dst}, v{dst}, v{tmp}")

    rowmax(S + 16, T)
    crossmax(T, T + 1)
    a(f"""
    v_mov_b32 v{T + 1}, 0
    v_cvt_pk_bf16_f32 v{T}, -v{T}, v{T + 1}
    v_cndmask_b32 v{Q + 6}, v{Q + 6}, v{T}, s[52:53]
    s_waitcnt lgkmcnt(0)
    s_nop 0
    """)
    mfma(a, S, K, Q, None)
    mfma(a, S, K + 4, Q + 4, S)
    for i in range(4):
        a(f"v_mov_b32 v{P + 4 + i}, 0")
        a(f"v_mov_b32 v{V + 28 + i}, 0")
    a("s_nop 7")
    PRIO = {2: 3, 3: 2, 0: 1, 1: 0} if not OPT.get("lad2") else {2: 2, 3: 1, 0: 1, 1: 0}
    stamp(a, 9)
    stamp2(a, 8)
    a.raw(".p2align 6")
    if OPT.get("shift"):
        a("s_nop 0")
    a.label("A_LOOP")
    for it, u in [(it, u) for it in range(8 if (DIAG and OPT.get('unroll')) else 1) for u in range(4)]:
        sc = S + (u % 2) * 16
        sn = S + ((u + 1) % 2) * 16
        kn = K + ((u + 1) % 2) * 8
        a("s_waitcnt lgkmcnt(0)")
        if u == 2:
            a("s_barrier")
            if it in (0, 3, 7) and OPT.get("unroll"):
                stamp(a, {0: 10, 3: 11, 7: 12}[it])
        a(f"s_setprio {PRIO[u]}")
        va = VCUR if u < 2 else VNEXT
        off = ((u + 2) % 4) * 8192
        pu = (u - 1) % 4

        def e(*idx):
            for i in idx:
                a(f"v_exp_f32 v{sc + i}, v{sc + i}")

        def c(i):
            a(f"v_cvt_pk_bf16_f32 v{P + i}, v{sc + 2 * i}, v{sc + 2 * i + 1}")

        e(0, 1)
        mfma(a, O, V + pu * 8 + 4, P + 4, O)
        for j in range(2):
            a(f"ds_read_b128 {vr(K + (u % 2) * 8 + j * 4, 4)}, v{va} offset:{off + j * 1024}")
        e(2, 3)
        c(0)
        e(4, 5)
        c(1)
        mfma(a, sn, kn, Q, None)
        for j in range(2):
            a(f"ds_read_b128 {vr(V + ((u + 2) % 4) * 8 + j * 4, 4)}, v{va} offset:{off + 2048 + j * 1024}")
        e(6, 7)
        c(2)
        e(8)
        c(3)
        e(9)
        mfma(a, sn, kn + 4, Q + 4, sn)
        if u in (1, 3):
            a(f"s_bitcmp1_b32 s63, s47")
            a(f"s_cbranch_scc1 A_RARE{u}")
            a.label(f"A_BACK{u}")
        e(10, 11)
        c(4)
        e(12, 13)
        c(5)
        mfma(a, O, V + u * 8, P, O)
        e(14, 15)
        c(6)
        c(7)
        if u == 3:
            a(f"v_mov_b32 v{VCUR}, v{VNEXT}")
            a("s_add_u32 s46, s46, 32768")
            a("s_cmp_eq_u32 s46, 98304")
            a("s_cselect_b32 s46, 0, s46")
            a(f"v_add_u32 v{VNEXT}, s46, v{VBASE}")
            a("s_sub_u32 s47, s47, 1")
            a("s_cmp_lg_u32 s47, 0")
    a("s_cbranch_scc1 A_LOOP")
    mfma(a, O, V + 28, P + 4, O)
    stamp(a, 13)
    stamp2(a, 10)
    a(f"""
    s_lshl_b32 s43, s49, 12
    s_add_u32 s43, s43, 32768
    v_add_u32 v5, s43, v9
    s_waitcnt lgkmcnt(0)
    s_nop 11
    s_cmp_eq_u32 s62, 0
    s_cbranch_scc1 A_FIN
    """)
    for q in range(4):
        a(f"ds_write_b128 v5, {vr(O + 4 * q, 4)} offset:{q * 1024}")
    a("s_waitcnt lgkmcnt(0)")
    a("s_barrier")
    stamp_flush(a)
    a("s_endpgm")
    a.label("A_FIN")
    a("s_barrier")
    stamp(a, 10)
    for q in range(4):
        a(f"ds_read_b128 {vr(S + 4 * q, 4)}, v5 offset:{q * 1024}")
    a("s_waitcnt lgkmcnt(0)")
    for p in (7, 0, 1, 2, 3, 4, 5, 6, 8, 9, 10, 11, 12, 13, 14):
        a(f"v_add_f32 v{O + p}, v{O + p}, v{S + p}")

    def get_l():
        a(f"v_mov_b32 v{T}, v{O + 7}")
        a(f"v_mov_b32 v{T + 1}, v{O + 7}")
        a(f"v_mov_b32 v{O + 7}, 0")
        a(f"v_mov_b32 v{O + 15}, 0")
        a(f"v_permlane32_swap_b32 v{T + 1}, v{T}")

    get_l()
    for c4 in range(4):
        a(f"v_mul_f32 v{T + 2 + c4}, 0, v{O + c4}")
    for p in range(4, 16):
        if p not in (7, 15):
            a(f"v_fmac_f32 v{T + 2 + p % 4}, 0, v{O + p}")
    a(f"""
    v_add_f32 v{T + 2}, v{T + 2}, v{T + 3}
    v_add_f32 v{T + 4}, v{T + 4}, v{T + 5}
    v_add_f32 v{T + 2}, v{T + 2}, v{T + 4}
    s_mov_b32 s44, {f2u(2.0 ** -30):#x}
    s_mov_b32 s45, {f2u(2.0 ** 60):#x}
    v_cmp_eq_f32 s[64:65], 0, v{T + 2}
    v_cmp_le_f32 s[66:67], s44, v{T + 1}
    v_cmp_ge_f32 vcc, s45, v{T + 1}
    s_and_b64 s[64:65], s[64:65], s[66:67]
    s_and_b64 s[64:65], s[64:65], vcc
    s_cmp_eq_u64 s[64:65], -1
    s_cbranch_scc0 A_FALL
    """)
    a.label("A_NORM")
    stamp(a, 11)
    a(f"""
    v_rcp_f32 v{T + 2}, v{T + 1}
    s_lshl_b32 s43, s61, 4
    s_add_u32 s43, s43, s60
    s_lshl_b32 s44, s43, 11
    s_add_u32 s44, s44, {WS_O}
    s_waitcnt vmcnt(0)
    v_mul_f32 v{T + 2}, v{T + 2}, v{VG}
    """)
    for p in range(16):
        if p not in (7, 15):
            a(f"v_mul_f32 v{O + p}, v{O + p}, v{T + 2}")
    for p in range(8):
        a(f"v_cvt_pk_bf16_f32 v{P + p}, v{O + 2 * p}, v{O + 2 * p + 1}")
    stamp(a, 12)
    a(f"v_or_b32 v{P + 3}, v{P + 3}, v7")
    a(f"v_or_b32 v{P + 7}, v{P + 7}, v7")
    a(f"buffer_store_dwordx4 {vr(P, 4)}, v9, {WS}, s44 offen sc1")
    a(f"buffer_store_dwordx4 {vr(P + 4, 4)}, v9, {WS}, s44 offen offset:1024 sc1")
    stamp_flush(a)
    a("s_endpgm")
    xs = OPT.get("xstore", 1)
    for u in (1, 3):
        a.label(f"A_RARE{u}")
        n1, n2 = a.newlabel("AR"), a.newlabel("AR")
        a("s_cmp_lg_u32 s47, 8")
        a(f"s_cbranch_scc1 {n1}")
        if xs:
            a("s_cmp_eq_u32 s62, 0")
            a(f"s_cbranch_scc1 {'A_XFLAG' if u == OPT.get('xfu', 1) else f'A_BACK{u}'}")
        for j in range(2):
            a(f"buffer_store_dwordx4 {vr(HP + (u // 2 * 2 + j) * 4, 4)}, v9, {WS}, s{40 + 2 * (u // 2)} offen offset:{j * 1024} sc1")
        a(f"s_branch A_BACK{u}")
        a.label(n1)
        if u == OPT.get("hfu", 3):
            a("s_cmp_lg_u32 s47, 7")
            a(f"s_cbranch_scc1 {n2}")
            a("s_cmp_eq_u32 s62, 0")
            a(f"s_cbranch_scc1 A_BACK{u}")
            a("s_waitcnt vmcnt(0)")
            flag_store(a, [59])
            a(f"s_branch A_BACK{u}")
            a.label(n2)
        if u == 3:
            a("s_cmp_lg_u32 s47, 2")
            a(f"s_cbranch_scc1 A_BACK{u}")
            a(f"buffer_load_dword v{VG}, v6, {WS}, s41 offen sc1")
        a(f"s_branch A_BACK{u}")
    a.label("A_XFLAG")
    a("s_waitcnt vmcnt(0)")
    flag_store(a, [59])
    a(f"s_branch A_BACK{OPT.get('xfu', 1)}")
    a.label("A_FALL")
    a(f"""
    v_cndmask_b32 v{Q + 6}, v{Q + 6}, 0, s[52:53]
    v_mov_b32 v{T + 6}, 0xff800000
    s_mov_b32 s44, s38
    s_mov_b32 s47, 64
    """)
    a.label("A_FL1")
    a(f"buffer_load_dwordx4 {vr(K, 4)}, v9, {WS}, s44 offen sc1")
    a(f"buffer_load_dwordx4 {vr(K + 4, 4)}, v9, {WS}, s44 offen offset:1024 sc1")
    a("s_waitcnt vmcnt(0)")
    mfma(a, S, K, Q, None)
    mfma(a, S, K + 4, Q + 4, S)
    a("s_nop 15")
    rowmax(S, T + 7)
    a(f"""
    v_max_f32 v{T + 6}, v{T + 6}, v{T + 7}
    s_add_u32 s44, s44, 4096
    s_sub_u32 s47, s47, 1
    s_cmp_lg_u32 s47, 0
    s_cbranch_scc1 A_FL1
    """)
    crossmax(T + 6, T + 7)
    for r in range(16):
        a(f"v_mov_b32 v{O + r}, 0")
    a("s_mov_b32 s44, s38")
    a("s_mov_b32 s47, 64")
    a.label("A_FL2")
    a(f"buffer_load_dwordx4 {vr(K, 4)}, v9, {WS}, s44 offen sc1")
    a(f"buffer_load_dwordx4 {vr(K + 4, 4)}, v9, {WS}, s44 offen offset:1024 sc1")
    a(f"buffer_load_dwordx4 {vr(V, 4)}, v9, {WS}, s44 offen offset:2048 sc1")
    a(f"buffer_load_dwordx4 {vr(V + 4, 4)}, v9, {WS}, s44 offen offset:3072 sc1")
    a("s_waitcnt vmcnt(0)")
    mfma(a, S, K, Q, None)
    mfma(a, S, K + 4, Q + 4, S)
    a("s_nop 15")
    for r in range(16):
        a(f"v_sub_f32 v{S + r}, v{S + r}, v{T + 6}")
    for r in range(16):
        a(f"v_exp_f32 v{S + r}, v{S + r}")
    a("s_nop 0")
    for p in range(8):
        a(f"v_cvt_pk_bf16_f32 v{P + p}, v{S + 2 * p}, v{S + 2 * p + 1}")
    a("s_nop 1")
    mfma(a, O, V, P, O)
    mfma(a, O, V + 4, P + 4, O)
    a("""
    s_add_u32 s44, s44, 4096
    s_sub_u32 s47, s47, 1
    s_cmp_lg_u32 s47, 0
    s_cbranch_scc1 A_FL2
    s_nop 15
    """)
    get_l()
    a("s_branch A_NORM")


def gen_aux(a):
    a.label("L_AUX")
    VXE, VXO, VC, VF = 10, 11, 12, 13
    a(f"""
    s_setprio 3
    s_sub_u32 s49, s26, 8
    s_lshl_b32 s3, s56, 7
    s_lshl_b32 s66, s49, 5
    s_add_u32 s3, s3, s66
    v_lshrrev_b32 v2, 3, v1
    v_and_b32 v3, 7, v1
    v_lshrrev_b32 v4, 4, v1
    v_add_u32 v5, s3, v2
    v_mul_u32_u24 v5, 896, v5
    v_xor_b32 v6, v3, v4
    v_lshl_add_u32 v{VXE}, v6, 4, v5
    v_xor_b32 v6, 4, v6
    v_lshl_add_u32 v{VXO}, v6, 4, v5
    v_add_u32 v{VXO}, {8 * 896 - 1024}, v{VXO}
    s_lshl_b32 s3, s49, 4
    v_lshrrev_b32 v4, 2, v1
    v_add_u32 v4, s3, v4
    v_mul_u32_u24 v4, 2688, v4
    v_and_b32 v5, 3, v1
    v_lshl_add_u32 v4, v5, 4, v4
    s_mul_i32 s65, s59, 56
    v_add_u32 v{VC}, s65, v4
    s_lshl_b32 s62, s49, 12
    s_lshl_b32 s63, s49, 10
    s_add_u32 s63, s63, {FB}
CHUNKORDER
    s_waitcnt lgkmcnt(0)
    """)
    srd(a, 32, 4, X_BYTES)
    srd(a, 44, 6, WQKV_BYTES)

    def dma1(c):
        tag = f"c{c}"
        a(f"s_bfe_u32 s37, s68, {0x40000 + 4 * c:#x}")
        a(f"s_mul_i32 s36, s37, {64 * 2688}")
        for j in range(3):
            a(f"s_add_u32 m0, s63, {(c % 3) * BLK + j * 4096}")
            a(f"s_add_u32 s3, s36, {j * 56}")
            a.vmem(f"buffer_load_dwordx4 v{VC}, s[44:47], s3 offen lds", tag)
        a(f"s_add_u32 m0, s62, {c * BLK}")
        a("s_lshl_b32 s3, s37, 7")
        for i in range(4):
            if i == 2:
                a("s_add_u32 s3, s3, 12288")
            a.vmem(f"buffer_load_dwordx4 v{VXO if i % 2 else VXE}, s[32:35], s3 offen offset:{i * 1024} lds", tag)

    stamp(a, 12)
    dma1(0)
    stamp(a, 13)
    dma1(1)
    a(f"""
    v_mul_u32_u24 v4, 3584, v2
    v_lshrrev_b32 v5, 1, v3
    v_and_b32 v6, 2, v2
    v_xor_b32 v5, v5, v6
    s_lshr_b32 s3, s49, 1
    v_xor_b32 v5, s3, v5
    v_lshl_add_u32 v4, v5, 5, v4
    v_and_b32 v7, 1, v3
    v_lshl_add_u32 v4, v7, 4, v4
    s_lshl_b32 s64, s57, 1
    s_and_b32 s65, s49, 1
    s_add_u32 s64, s64, s65
    s_lshl_b32 s64, s64, 7
    v_add_u32 v{VF}, s64, v4
    s_cmp_ge_u32 s49, 2
    s_cselect_b64 s[12:13], s[14:15], s[12:13]
    s_cmp_eq_u32 s58, 1
    s_cselect_b32 s66, 0, {WG_BYTES}
    """)
    srd(a, 40, 12, "s66")
    srd(a, 28, 24, WS_SIZE)

    def dma2(j):
        a(f"s_add_u32 m0, s62, {W_BLK[j] * BLK}")
        a(f"s_bfe_u32 s37, s68, {0x40000 + 4 * (j // 2):#x}")
        a(f"s_mul_i32 s3, s37, {64 * 3584}")
        if j % 2:
            a(f"s_add_u32 s3, s3, {32 * 3584}")
        for i in range(4):
            if i:
                a(f"s_add_u32 s3, s3, {8 * 3584 - 1024}")
            a.vmem(f"buffer_load_dwordx4 v{VF}, s[40:43], s3 offen offset:{i * 1024} lds", f"f{j}")

    def issue2(b):
        for j in range(14):
            if W_ISSUE[j] == b:
                dma2(j)

    for c in range(7):
        stamp(a, 3 + c, grp=3)
        a.vwait(f"c{c}")
        a("s_barrier")
        if c + 2 <= 6:
            dma1(c + 2)
        issue2(c - 7)
    a(f"""
    s_lshr_b32 s60, s48, 4
    s_lshl_b32 s3, s27, 1
    s_add_u32 s60, s60, s3
    s_lshl_b32 s38, s60, 18
    s_add_u32 s38, s38, {WS_KV}
    s_lshl_b32 s39, s49, 13
    v_add_u32 v8, s39, v9
    v_mov_b32 v2, 0
    s_and_b32 s59, s48, 15
    s_lshl_b32 s59, s59, 2
    s_add_u32 s59, s59, s49
    s_lshl_b32 s61, s60, 2
    s_add_u32 s61, s61, s49
    s_mul_i32 s61, s61, {FS}
    s_add_u32 s61, s61, {WS_FKV}
    v_lshlrev_b32 v3, 3, v1
    v_add_u32 v3, s61, v3
    s_mul_i32 s61, s60, {FS}
    s_lshr_b32 s58, s59, 1
    s_lshl_b32 s3, s59, 3
    s_add_u32 s61, s61, s3
    s_add_u32 s61, s61, {WS_FQ}
    v_mov_b32 v4, s61
    v_cmp_gt_u32 vcc, 32, v1
    s_mul_i32 s58, s58, {FS}
    s_lshl_b32 s54, s60, 6
    v_cndmask_b32 v15, v4, v3, vcc
    s_add_u32 s54, s54, s59
    s_lshl_b32 s54, s54, 11
    s_add_u32 s54, s54, {WS_Q}
    s_lshl_b32 s55, s49, 11
    s_add_u32 s55, s55, {4 * BLK}
    s_mov_b32 s67, 0
    """)
    VKV = 8

    def kv(i):
        st = (i % 3) * 32768
        for half in range(2):
            a(f"s_add_u32 m0, s39, {st + half * 4096}")
            a(f"s_add_u32 s3, s38, {i * 32768 + half * 4096}")
            for j in range(4):
                a.vmem(f"buffer_load_dwordx4 v{VKV}, {WS}, s3 offen offset:{j * 1024} sc1 lds", f"kv{i}")

    def load_q():
        a("s_mov_b32 m0, s55")
        a("s_nop 0")
        a.vmem(f"buffer_load_dwordx4 v9, {WS}, s54 offen sc1 lds", "q")
        a.vmem(f"buffer_load_dwordx4 v9, {WS}, s54 offen offset:1024 sc1 lds", "q")

    for n, b in enumerate(P2_BARS):
        if b < 14:
            a.vwait(*[f"f{j}" for j in range(b, P2_BARS[n + 1])])
        if 1 <= b <= 12:
            stamp(a, 1 + b, grp=1)
        a("s_barrier")
        issue2(b)
        if b == 0:
            a.vmem(f"global_load_dwordx2 {vr(NONCE_V, 2)}, v2, s[22:23] sc1", "f2")
        if b == 10:
            nonce_check(a, 2)
            a(f"v_readfirstlane_b32 s50, v{NONCE_V}")
            a(f"v_readfirstlane_b32 s51, v{NONCE_V + 1}")
            poll(a, 15, 52, 16)
            stamp(a, 3)
            load_q()
            kv(0)
            a.vwait("kv0")
    stamp(a, 2)
    kv(1)
    a("s_cmp_ge_u32 s48, 28")
    a("s_cbranch_scc1 L_LOADER")
    vm_at_split = list(a.vm)

    VW, VTR, VOWN, VRD, VTO, VO = 10, 11, 13, 14, 160, 162
    ACC, H, WF, VG = 16, 80, 144, 166
    a(f"""
    s_mul_i32 s56, s48, 37
    s_lshr_b32 s56, s56, 8
    s_mul_i32 s57, s56, 7
    s_sub_u32 s57, s48, s57
    s_lshl_b32 s3, s27, 2
    s_add_u32 s56, s56, s3
    s_lshl_b32 s46, s49, 14
    s_add_u32 s46, s46, {RING}
    s_mul_i32 s47, s56, {2 * 112}
    s_mul_i32 s3, s49, 28
    s_add_u32 s47, s47, s3
    s_lshl_b32 s47, s47, 10
    s_add_u32 s47, s47, {WS_H}
    s_mul_i32 s44, s49, {448 * 896}
    s_mul_i32 s45, s49, {112 * 896}
    s_add_u32 s62, s49, 4
    s_sub_u32 s3, s49, 2
    s_cmp_lt_u32 s49, 2
    s_cselect_b32 s62, s62, s3
    s_lshl_b32 s62, s62, 14
    """)
    a(f"""
    v_lshrrev_b32 v3, 3, v1
    v_bfe_u32 v4, v1, 1, 2
    v_and_b32 v5, 2, v3
    v_xor_b32 v4, v4, v5
    v_and_b32 v5, 1, v1
    v_mul_u32_u24 v6, 896, v3
    v_lshl_add_u32 v6, v4, 5, v6
    v_lshl_add_u32 v6, v5, 4, v6
    s_lshl_b32 s3, s57, 7
    v_add_u32 v{VW}, s3, v6
    v_lshrrev_b32 v3, 5, v1
    v_bfe_u32 v4, v1, 4, 1
    v_bfe_u32 v5, v1, 2, 2
    v_and_b32 v6, 3, v1
    v_lshl_add_u32 v7, v3, 2, v5
    v_lshlrev_b32 v7, 7, v7
    v_lshl_add_u32 v7, v6, 3, v7
    v_and_b32 v5, 2, v5
    v_xor_b32 v5, v5, v4
    v_lshl_add_u32 v6, v5, 5, v7
    v_add_u32 v{VTR}, s46, v6
    v_xor_b32 v5, 2, v5
    v_lshl_add_u32 v6, v5, 5, v7
    v_add_u32 v{VTR + 1}, s46, v6
    v_add_u32 v{VOWN}, s46, v9
    s_lshl_b32 s3, s49, 12
    s_add_u32 s3, s3, {RING}
    v_add_u32 v{VRD}, s3, v9
    """)
    srd(a, 32, 16, WD_BYTES)

    orders = ([0, 1, 4, 5, 8, 9, 12, 13, 2, 3, 6, 7, 10, 11], [2, 3, 6, 7, 10, 11, 0, 1, 4, 5, 8, 9, 12, 13])
    packs = [sum(q << (4 * n) for n, q in enumerate(o)) for o in orders]
    masks = [sum(1 << (16 + q) for q in o[:6]) for o in orders]
    a(f"""
    s_mov_b32 s36, {packs[0] & 0xffffffff:#x}
    s_mov_b32 s37, {packs[0] >> 32:#x}
    s_mov_b32 s59, {masks[0]:#x}
    s_bitcmp1_b32 s49, 0
    s_cselect_b32 s36, {packs[1] & 0xffffffff:#x}, s36
    s_cselect_b32 s37, {packs[1] >> 32:#x}, s37
    s_cselect_b32 s59, {masks[1]:#x}, s59
    """)

    def pair(k):
        n = k // 2
        a(f"s_bfe_u32 s3, s{36 + n // 8}, {0x40000 + 4 * (n % 8):#x}")

    def load_w(k):
        pair(k)
        a(f"s_mul_i32 s3, s3, {32 * 896}")
        a(f"s_add_u32 m0, s46, {(k % 8) * 2048}")
        a("s_add_u32 s3, s3, s44")
        if k % 2:
            a(f"s_add_u32 s3, s3, {16 * 896}")
        a.vmem(f"buffer_load_dwordx4 v{VW}, s[32:35], s3 offen lds", f"w{k}")
        a("s_add_u32 s3, s3, 6144")
        a.vmem(f"buffer_load_dwordx4 v{VW}, s[32:35], s3 offen offset:1024 lds", f"w{k}")

    def load_h(k, r):
        pair(k)
        a("s_lshl_b32 s3, s3, 11")
        a("s_add_u32 s3, s3, s47")
        if r:
            a(f"s_add_u32 s3, s3, {112 * 1024}")
        a.vmem(f"buffer_load_dwordx4 {vr(H + ((k % 8) * 2 + r) * 4, 4)}, v9, {WS}, s3 offen offset:{(k % 2) * 1024} sc1", f"h{k}")

    a(f"""
    s_mul_i32 s3, s56, {FS}
    v_mov_b32 v3, s58
    v_mov_b32 v4, s3
    v_cmp_gt_u32 vcc, 4, v1
    v_and_b32 v5, 1, v1
    s_mov_b32 s61, {WS_FG}
    v_cndmask_b32 v3, v4, v3, vcc
    v_lshl_add_u32 v3, v5, 3, v3
    v_add_u32 v163, s61, v3
    """)
    a(f"""
    v_and_b32 v15, 15, v1
    v_min_u32 v15, 13, v15
    v_lshlrev_b32 v15, 3, v15
    s_lshl_b32 s61, s56, 2
    s_add_u32 s61, s61, s49
    s_mul_i32 s61, s61, {FS}
    s_add_u32 s61, s61, {WS_FH}
    v_add_u32 v15, s61, v15
    v_cmp_gt_u32 vcc, 16, v1
    s_nop 1
    v_cndmask_b32 v15, v15, v163, vcc
    v_and_b32 v3, 31, v1
    v_lshlrev_b32 v3, 2, v3
    """)
    a(f"s_setprio {OPT.get('gprio', 0)}")
    stamp(a, 4)
    for k in range(8):
        load_w(k)

    def trd(k):
        b = WF + (k % 2) * 8
        o = (k % 8) * 2048
        for ct in range(2):
            a(f"ds_read_b64_tr_b16 {vr(b + ct * 4, 2)}, v{VTR + ct} offset:{o}")
            a(f"ds_read_b64_tr_b16 {vr(b + ct * 4 + 2, 2)}, v{VTR + ct} offset:{o + 1024}")

    h0n = OPT.get("h0n", 4)

    def step(k):
        a.vwait(f"h{k}", f"w{k + 1}")
        a("s_waitcnt lgkmcnt(0)")
        if k + 1 < 28:
            trd(k + 1)
        n = 0
        for r in range(2):
            for ct in range(2):
                d = ACC + (r * 2 + ct) * 16
                mfma(a, d, WF + (k % 2) * 8 + ct * 4, H + ((k % 8) * 2 + r) * 4, None if k == 0 else d)
                if k + h0n < 8 and n in (0, 2):
                    load_h(k + h0n, n // 2)
                if k + 8 < 28:
                    if n == 0:
                        load_w(k + 8)
                    if n == 1:
                        load_h(k + 8, 0)
                    if n == 3:
                        load_h(k + 8, 1)
                n += 1

    spi = OPT.get("spi", 3)
    hs, hs2 = OPT.get("hs", 2), OPT.get("hs2", 4)
    plan = [0] * 9
    plan[hs] = OPT.get("sp0", 0)
    for i in range(hs + 1, hs2):
        plan[i] = min(spi, 4 - sum(plan))
    for i in range(hs2, 8):
        plan[i] = spi
    plan[8] = OPT.get("spl", 4)
    assert sum(plan[:hs2]) <= 4
    k = 0
    for i in range(9):
        if i == hs:
            lp = a.newlabel("HP")
            a("s_setprio 3")
            a("s_mov_b32 s69, 0x40000")
            a.label(lp)
            a("s_waitcnt vmcnt(0)")
            a("v_cmp_eq_u64 vcc, s[50:51], v[6:7]")
            a("s_sub_u32 s69, s69, 1")
            a("s_cbranch_scc1 L_HOK")
            a("s_andn2_b32 s3, s59, vcc_lo")
            a("s_cbranch_scc0 L_HOK")
            a(f"buffer_load_dwordx2 v[6:7], v15, {WS}, s52 offen sc1")
            a(f"s_branch {lp}")
            a.label("L_HOK")
            a("s_setprio 0")
            a.vreset()
            stamp(a, 5)
        if i == hs2:
            a("s_setprio 3")
            a.vwait("hf")
            a("v_cmp_eq_u64 vcc, s[50:51], v[6:7]")
            a("s_nop 1")
            a("s_cmp_eq_u64 vcc, -1")
            a("s_cbranch_scc1 L_HOK2")
            keep = list(a.vm)
            poll(a, 15, 52, 6)
            a.vm = keep
            a.label("L_HOK2")
            a("s_setprio 0")
        if i == 1:
            kv(2)
        if i >= 1 and i + 2 <= 7:
            kv(i + 2)
        if i == hs:
            for kk in range(h0n):
                load_h(kk, 0)
                load_h(kk, 1)
            trd(0)
        if i == 7:
            srd(a, 40, 8, WO_BYTES)
            for g4 in range(4):
                a(f"s_add_u32 m0, s62, {g4 * 4096}")
                for j in range(4):
                    if g4 == 3 and j == 3:
                        continue
                    a(f"s_add_u32 s3, s45, {g4 * 32 * 896 + j * 6144}")
                    a.vmem(f"buffer_load_dwordx4 v{VW}, s[40:43], s3 offen offset:{j * 1024} lds", "wo")
        for _ in range(plan[i]):
            if k < 28:
                step(k)
                k += 1
        a.vwait(f"kv{i + 1}")
        if i == 8:
            a(f"""
            s_lshl_b32 s3, s56, 8
            s_add_u32 s3, s3, {WS_G}
            """)
            a.vmem(f"buffer_load_dword v{VG}, v3, {WS}, s3 offen sc1", "g")
            a.vmem(f"buffer_load_dword v{VG + 1}, v3, {WS}, s3 offen offset:128 sc1", "g")
        if i in (hs - 1, hs2 - 1):
            a.vmem(f"buffer_load_dwordx2 v[6:7], v15, {WS}, s52 offen sc1", "hf")
        if i < 6:
            stamp(a, 2 + 2 * i, grp=6)
        a("s_barrier")
        if i < 6:
            stamp(a, 3 + 2 * i, grp=6)
        if i in (3, 7, 8):
            stamp(a, {3: 6, 7: 7, 8: 8}[i])
    a(f"s_setprio {OPT.get('tprio', 0)}")
    while k < 28:
        step(k)
        k += 1
    stamp(a, 9)
    a.vwait("g", "wo")
    a(f"""
    v_sub_f32 v2, 1.0, v{VG}
    v_sub_f32 v4, 1.0, v{VG + 1}
    v_mov_b32 v3, v2
    v_mov_b32 v5, v4
    s_lshl_b32 s47, s56, 6
    s_lshl_b32 s3, s49, 3
    s_add_u32 s47, s47, s3
    s_lshl_b32 s47, s47, 10
    s_add_u32 s64, s47, {WS_O}
    s_add_u32 s65, s64, 32768
    s_add_u32 s44, s64, 4096
    s_add_u32 s45, s65, 4096
    s_mov_b32 s66, 15
    s_mov_b32 s69, 0x40000
    """)
    for p in range(32):
        a(f"v_pk_mul_f32 {vr(ACC + 2 * p, 2)}, {vr(ACC + 2 * p, 2)}, {'v[2:3]' if p < 16 else 'v[4:5]'}")
    TA = [2, 3, 4, 5, 6, 7, 10, 11]
    VTAG = 12
    make_tag(a, VTAG, 15)
    a("""
    v_lshrrev_b32 v15, 5, v1
    v_bfe_u32 v160, v1, 2, 2
    v_bfe_u32 v161, v1, 4, 1
    v_and_b32 v163, 3, v1
    v_lshlrev_b32 v163, 3, v163
    v_add_u32 v163, s62, v163
    """)
    for pat, (s0, s1) in enumerate(((0, 4), (8, 11), (14, 18), (22, 25))):
        a(f"v_mul_u32_u24 v{WF}, {s1 - s0}, v15")
        a(f"v_add3_u32 v{WF}, v{WF}, v160, {s0}")
        a(f"v_and_b32 v{WF + 1}, 2, v{WF}")
        a(f"v_xor_b32 v{WF + 1}, v{WF + 1}, v161")
        a(f"v_lshl_add_u32 v{WF}, v{WF}, 7, v163")
        a(f"v_lshl_add_u32 v{TA[2 * pat]}, v{WF + 1}, 5, v{WF}")
        a(f"v_xor_b32 v{TA[2 * pat + 1]}, 64, v{TA[2 * pat]}")
    a.label("O_LOOP")
    for hd in range(4):
        sk = a.newlabel("OSK")
        a(f"s_bitcmp1_b32 s66, {hd}")
        a(f"s_cbranch_scc0 {sk}")
        for u in range(2):
            for r in range(2):
                k = hd * 2 + u
                sreg = (64 if k < 4 else 44) + r
                a(f"buffer_load_dwordx4 {vr(H + (k * 2 + r) * 4, 4)}, v9, {WS}, s{sreg} offen offset:{(k % 4) * 1024} sc1")
        a.label(sk)
    a("s_waitcnt vmcnt(0)")
    for hd in range(4):
        sk = a.newlabel("OSK")
        hb = H + hd * 16
        a(f"s_bitcmp1_b32 s66, {hd}")
        a(f"s_cbranch_scc0 {sk}")
        for u in range(2):
            for ct in range(2):
                for sec in range(2):
                    a(f"ds_read_b64_tr_b16 {vr(WF + u * 8 + ct * 4 + sec * 2, 2)}, v{TA[(u * 2 + sec) * 2 + ct]} offset:{hd * 3584}")
        for q in range(4):
            a(f"v_xor_b32 v{hb + 4 * q + 3}, v{hb + 4 * q + 3}, v{VTAG}")
        a(f"v_or3_b32 v15, v{hb + 3}, v{hb + 7}, v{hb + 11}")
        a(f"v_or_b32 v15, v15, v{hb + 15}")
        a("v_cmp_gt_u32 vcc, 0x10000, v15")
        a("s_waitcnt lgkmcnt(0)")
        a("s_cmp_eq_u64 vcc, -1")
        a(f"s_cbranch_scc0 {sk}")
        a(f"s_bitset0_b32 s66, {hd}")
        for u in range(2):
            for r in range(2):
                for ct in range(2):
                    d = ACC + (r * 2 + ct) * 16
                    mfma(a, d, WF + u * 8 + ct * 4, hb + (u * 2 + r) * 4, d)
        a.label(sk)
    a(f"""
    s_cmp_eq_u32 s66, 0
    s_cbranch_scc1 O_DONE
    s_sub_u32 s69, s69, 1
    s_cbranch_scc1 O_DONE
    s_sleep {OPT.get('osleep', 1)}
    s_branch O_LOOP
    """)
    a.label("O_DONE")
    a.vreset()
    stamp(a, 10)
    srd(a, 32, 20, X_BYTES)
    a(f"""
    v_and_b32 v2, 31, v1
    s_lshr_b32 s66, s49, 1
    s_and_b32 s67, s49, 1
    s_lshl_b32 s3, s56, 1
    s_add_u32 s3, s3, s66
    s_lshl_b32 s3, s3, 5
    v_add_u32 v2, s3, v2
    v_mul_u32_u24 v{VO}, 896, v2
    v_lshrrev_b32 v3, 5, v1
    v_lshl_add_u32 v{VO}, v3, 4, v{VO}
    s_lshl_b32 s63, s57, 7
    s_lshl_b32 s3, s67, 6
    s_add_u32 s63, s63, s3
    """)
    stamp(a, 11)
    for t in range(4):
        for q in range(4):
            a(f"ds_write_b128 v{VOWN}, {vr(ACC + t * 16 + q * 4, 4)} offset:{t * 4096 + q * 1024}")
    a("s_waitcnt lgkmcnt(0)")
    a("s_barrier")
    for w in range(4):
        for q in range(4):
            a(f"ds_read_b128 {vr(ACC + w * 16 + q * 4, 4)}, v{VRD} offset:{w * 16384 + q * 1024}")
        if w == 2:
            a("s_waitcnt lgkmcnt(4)")
            for p in range(8):
                a(f"v_pk_add_f32 {vr(H + 2 * p, 2)}, {vr(ACC + 2 * p, 2)}, {vr(ACC + 16 + 2 * p, 2)}")
    a("s_waitcnt lgkmcnt(0)")
    for p in range(8):
        a(f"v_pk_add_f32 {vr(ACC + 32 + 2 * p, 2)}, {vr(ACC + 32 + 2 * p, 2)}, {vr(ACC + 48 + 2 * p, 2)}")
    for p in range(8):
        a(f"v_pk_add_f32 {vr(H + 2 * p, 2)}, {vr(H + 2 * p, 2)}, {vr(ACC + 32 + 2 * p, 2)}")
    for p in range(8):
        a(f"v_cvt_pk_bf16_f32 v{ACC + p}, v{H + 2 * p}, v{H + 2 * p + 1}")
    a("s_nop 1")
    for pr in range(2):
        a(f"v_permlane32_swap_b32 v{ACC + 4 * pr}, v{ACC + 4 * pr + 2}")
        a(f"v_permlane32_swap_b32 v{ACC + 4 * pr + 1}, v{ACC + 4 * pr + 3}")
    for pr in range(2):
        a(f"buffer_store_dwordx4 {vr(ACC + 4 * pr, 4)}, v{VO}, s[32:35], s63 offen offset:{32 * pr}")
    stamp_flush(a)
    a("s_endpgm")

    a.label("L_LOADER")
    a.vm = list(vm_at_split)
    a(f"""
    v_and_b32 v3, 1, v1
    v_lshlrev_b32 v3, 3, v3
    s_add_u32 s61, s58, {WS_FG}
    """)
    for i in range(7):
        if i == 1:
            kv(2)
        if i >= 1 and i + 2 <= 7:
            kv(i + 2)
        if i == 2:
            poll(a, 3, 61, 16)
        a.vwait(f"kv{i + 1}")
        a("s_barrier")
    stamp_flush(a)
    a.label("L_END")
    a("s_endpgm")


def chunk_order():
    if OPT.get("first0", 1):
        n, seq, lead = 6, 0x654321654321, 1
    else:
        n, seq, lead = 7, 0x65432106543210, 0
    L = f"""
    s_lshr_b32 s68, s48, 3
    s_mul_i32 s68, s68, {OPT.get("rotc", 2)}
    s_and_b32 s3, s48, {OPT.get("rotm", 7)}
    s_add_u32 s68, s68, s3
    s_sub_u32 s3, s68, {n}
    s_cmp_ge_u32 s68, {n}
    s_cselect_b32 s68, s3, s68
    s_sub_u32 s3, s68, {n}
    s_cmp_ge_u32 s68, {n}
    s_cselect_b32 s68, s3, s68
    s_lshl_b32 s3, s68, 2
    s_mov_b32 s68, {seq & 0xffffffff:#x}
    s_mov_b32 s69, {seq >> 32:#x}
    s_lshr_b64 s[68:69], s[68:69], s3
    s_lshl_b32 s68, s68, {4 * lead}
    """
    return "".join("    " + l.strip() + "\n" for l in L.strip().split("\n"))


def main():
    global DIAG
    DIAG = os.environ.get("DIAG", "0") == "1"
    for kvp in os.environ.get("OPT", "").split(","):
        if kvp:
            k, _, v = kvp.partition("=")
            OPT[k] = int(v) if v else 1
    ref = open(f"cdna_kernels/{NAME}.s.ref").read().split("\n")
    head = [l for l in ref if l.startswith(";") and "@launch" not in l]
    a = Asm()
    for l in head:
        a.raw(l)
    a.raw("; @launch grid=(256,1,1) block=(768,1,1) lds=163840")
    a.raw('.amdgcn_target "amdgcn-amd-amdhsa--gfx950"')
    a.raw(".text")
    kn = NAME + "_kernel"
    a.raw(f".globl {kn}")
    a.raw(".p2align 8")
    a.raw(f".type {kn},@function")
    a.label(kn)
    gen_prologue(a)
    gen_p1_compute(a)
    gen_attention(a)
    gen_aux(a)
    a.raw('.section .rodata,"a"')
    out = a.text().replace("    CHUNKORDER\n", chunk_order()) + f""".p2align 6
.amdhsa_kernel {kn}
  .amdhsa_next_free_vgpr 168
  .amdhsa_next_free_sgpr 102
  .amdhsa_accum_offset 168
  .amdhsa_group_segment_fixed_size 0
  .amdhsa_kernarg_size 88
  .amdhsa_user_sgpr_count 2
  .amdhsa_user_sgpr_kernarg_segment_ptr 1
  .amdhsa_system_sgpr_workgroup_id_x 1
.end_amdhsa_kernel
"""
    path = sys.argv[1] if len(sys.argv) > 1 else f"cdna_kernels/{NAME}.s"
    open(path, "w").write(out)


if __name__ == "__main__":
    main()
```
